```python
import torch

def _softmax(x, axis=-1):
    return torch.softmax(x, dim=axis)
def _gelu(x):
    return torch.nn.functional.gelu(x, approximate="tanh")
def _silu(x):
    return torch.nn.functional.silu(x)
def _sigmoid(x):
    return torch.sigmoid(x)
def _layernorm(x, axis=-1, eps=1e-5):
    m = x.mean(dim=axis, keepdim=True)
    v = x.var(dim=axis, keepdim=True, unbiased=False)
    return (x - m) / torch.sqrt(v + eps)
def _scatter_add(tgt, idx, src, axis=0):
    return tgt.clone().index_add_(axis, idx, src)
def _segment_sum(src, seg, n):
    out = torch.zeros((n,) + src.shape[1:], dtype=src.dtype)
    return out.index_add_(0, seg, src)
def _pad(x, pw):
    flat = tuple(v for pair in reversed(pw) for v in pair)
    return torch.nn.functional.pad(x, flat)

kernel_name = 'parallel_sum__sliding_local_dilated__geglu_ffn__prompt'

def setup_inputs():

    _w = (lambda a: (lambda t: t.to(torch.bfloat16) if t.is_floating_point() else t)(torch.as_tensor(a)))
    def _A_setup():
        B, S, D = 1, 2048, 448
        return {
            "x": _w((lambda *s: torch.randn(*s, dtype=torch.bfloat16) * 0.05)(B, S, D)),
            "wqkv": _w((lambda *s: torch.randn(*s, dtype=torch.bfloat16) * 0.05)(D, 3 * D)),
            "wo": _w((lambda *s: torch.randn(*s, dtype=torch.bfloat16) * 0.05)(D, D)),
        }
    _A_in = _A_setup()

    def _B_setup():
        B, S, D, F = 1, 2048, 448, 1792
        return {
            "x": _w((lambda *s: torch.randn(*s, dtype=torch.bfloat16) * 0.05)(B, S, D)),
            "w_gate": _w((lambda *s: torch.randn(*s, dtype=torch.bfloat16) * 0.05)(D, F)),
            "w_up": _w((lambda *s: torch.randn(*s, dtype=torch.bfloat16) * 0.05)(D, F)),
            "w_down": _w((lambda *s: torch.randn(*s, dtype=torch.bfloat16) * 0.05)(F, D)),
        }
    _B_in = _B_setup()

    return {
        "A_x": _A_in["x"],
        "A_wqkv": _A_in["wqkv"],
        "A_wo": _A_in["wo"],
        "B_x": _B_in["x"],
        "B_w_gate": _B_in["w_gate"],
        "B_w_up": _B_in["w_up"],
        "B_w_down": _B_in["w_down"],
    }

def reference(A_x, A_wqkv, A_wo, B_x, B_w_gate, B_w_up, B_w_down):
    def _A_ref(x, wqkv, wo):
        B, S, D = x.shape
        H = 16; Dh = D // H
        W, dil = 8, 2
        qkv = (lambda x, *d: x.permute(*d))((x @ wqkv).reshape(B, S, 3, H, Dh), 2, 0, 3, 1, 4)
        q, k, v = qkv[0], qkv[1], qkv[2]
        scale = Dh ** -0.5
        pos = torch.arange(S)
        off = torch.arange(W) * dil
        idx = pos[:, None] - off[None, :]
        mask = idx >= 0
        idx_c = torch.where(mask, idx, 0).reshape(-1)
        kg = k[:, :, idx_c, :].reshape(B, H, S, W, Dh)
        vg = v[:, :, idx_c, :].reshape(B, H, S, W, Dh)
        logits = torch.einsum("bhsd,bhswd->bhsw", q, kg) * scale
        logits = torch.where(mask[None, None, :, :], logits, -1e9)
        attn = _softmax(logits, axis=-1)
        o = torch.einsum("bhsw,bhswd->bhsd", attn, vg)
        return (lambda x, *d: x.permute(*d))(o, 0, 2, 1, 3).reshape(B, S, D) @ wo

    def _B_ref(x, w_gate, w_up, w_down):
        return (_gelu(x @ w_gate) * (x @ w_up)) @ w_down

    x = A_x
    xn = _layernorm(x, axis=-1)
    return x + _A_ref(xn, A_wqkv, A_wo) + _B_ref(xn, B_w_gate, B_w_up, B_w_down)
```

```python
import re, copy

TRANS = ("v_exp_f32", "v_log_f32", "v_rcp_f32", "v_rsq_f32", "v_sqrt_f32", "v_sin_f32", "v_cos_f32")
REG = re.compile(r"^(-|abs\()?([vas])(\d+)\)?$")
RNG = re.compile(r"^(-)?([vas])\[(\d+):(\d+)\]$")

def regs_of(tok):
    tok = tok.strip()
    m = REG.match(tok)
    if m: return [m.group(2) + m.group(3)]
    m = RNG.match(tok)
    if m: return [m.group(2) + str(i) for i in range(int(m.group(3)), int(m.group(4)) + 1)]
    if tok in ("vcc",): return ["vcc_lo", "vcc_hi"]
    if tok in ("exec",): return ["exec_lo", "exec_hi"]
    if tok in ("vcc_lo", "vcc_hi", "m0", "exec_lo", "exec_hi"): return [tok]
    return []

def split_ops(s):
    out, depth, cur = [], 0, ""
    for ch in s:
        if ch in "[(": depth += 1
        if ch in "])": depth -= 1
        if ch == "," and depth == 0: out.append(cur.strip()); cur = ""
        else: cur += ch
    if cur.strip(): out.append(cur.strip())
    return out

class Ins:
    __slots__ = ("text", "mn", "kind", "rd", "wr", "A", "B", "C", "D", "states", "dpp", "lds", "wide")

def parse(text):
    i = Ins(); i.text = text
    t = text.split(";")[0].strip()
    mn, _, rest = t.partition(" ")
    i.mn = mn; i.rd = set(); i.wr = set(); i.A = i.B = i.C = i.D = None; i.states = 1; i.dpp = False; i.lds = False; i.wide = False
    ops = split_ops(rest)
    if ops:
        last = ops[-1].split()
        mods = last[1:]; ops[-1] = last[0]
    else: mods = []
    R = lambda k: regs_of(ops[k]) if k < len(ops) else []
    if mn.startswith("v_mfma"):
        i.kind = "mfma"; i.D = R(0); i.A = R(1); i.B = R(2); i.C = R(3)
        i.wr = set(i.D); i.rd = set(i.A) | set(i.B) | set(i.C)
    elif mn.startswith("v_"):
        i.kind = "trans" if mn.replace("_e32", "").replace("_e64", "") in TRANS else "valu"
        if mn.startswith("v_dot2"): i.kind = "dot"
        i.dpp = any(m.startswith(("row_", "quad_perm")) for m in mods) or "_dpp" in mn
        i.wr = set(R(0))
        for k in range(1, len(ops)): i.rd |= set(R(k))
        if mn.startswith(("v_fmac", "v_dot2c", "v_writelane")): i.rd |= i.wr
        if mn.startswith("v_permlane"): i.rd |= set(R(0)); i.wr |= set(R(1))
        if mn.startswith(("v_add_co", "v_sub_co", "v_addc_co")): i.wr |= set(R(1))
        if i.dpp: i.rd |= i.wr
    elif mn.startswith("ds_read") or mn.startswith("ds_bpermute") or mn.startswith("ds_swizzle"):
        i.kind = "ds"; i.wr = set(R(0))
        for k in range(1, len(ops)): i.rd |= set(R(k))
    elif mn.startswith("ds_write"):
        i.kind = "ds"
        for k in range(len(ops)): i.rd |= set(R(k))
    elif mn.startswith(("buffer_load", "global_load")):
        i.kind = "vmem"
        if "lds" in mods:
            i.lds = True; i.rd = {"m0"}
            for k in range(len(ops)): i.rd |= set(R(k))
        else:
            i.wr = set(R(0))
            for k in range(1, len(ops)): i.rd |= set(R(k))
    elif mn.startswith(("buffer_store", "global_store", "buffer_atomic", "global_atomic")):
        i.kind = "vmem"
        for k in range(len(ops)): i.rd |= set(R(k))
        i.wide = mn.endswith(("x3", "x4"))
        i.D = R(0) if mn.startswith("buffer") else R(1)
        if "atomic" in mn and "sc0" in mods: i.wr = set(R(0))
    elif mn == "s_nop":
        i.kind = "nop"; i.states = int(ops[0], 0) + 1
    elif mn in ("s_waitcnt", "s_barrier", "s_endpgm", "s_sleep", "s_setprio") or mn.startswith(("s_branch", "s_cbranch")):
        i.kind = "ctl"
    elif mn.startswith(("s_load", "s_memtime", "s_memrealtime", "s_buffer_load")):
        i.kind = "smem"; i.wr = set(R(0))
        for k in range(1, len(ops)): i.rd |= set(R(k))
    elif mn.startswith("s_cmp") or mn.startswith("s_bitcmp"):
        i.kind = "salu"
        for k in range(len(ops)): i.rd |= set(R(k))
    elif mn.startswith("s_"):
        i.kind = "salu"; i.wr = set(R(0))
        for k in range(1, len(ops)): i.rd |= set(R(k))
        if "saveexec" in mn: i.wr |= {"exec_lo", "exec_hi"}
    else:
        raise ValueError("cannot parse: " + text)
    return i

def isv(r): return r[0] in "va" and r[1:].isdigit()
def iss(r): return not isv(r)

class Emitter:
    def __init__(self):
        self.lines = []
        self.hist = []
        self.vm = []
        self.lg = []
        self.smem = False
        self.nins = 0
        self.stats = {}
    def fork(self):
        e = Emitter(); e.hist = list(self.hist); e.vm = list(self.vm); e.lg = list(self.lg); e.smem = self.smem
        return e
    def raw(self, s): self.lines.append(s)
    def label(self, name):
        self.lines.append(name + ":")
    def comment(self, s): self.lines.append("    ; " + s)
    def need(self, i):
        need = 0; dist = 0
        for p in reversed(self.hist):
            def req(n):
                nonlocal need
                if n - dist > need: need = n - dist
            pv = p.kind in ("valu", "trans", "dot")
            if pv:
                wv = {r for r in p.wr if isv(r)}; ws = {r for r in p.wr if iss(r)}
                if i.kind == "mfma" and wv & i.rd: req(2)
                if p.kind == "trans" and i.kind in ("valu", "dot") and wv & i.rd: req(1)
                if p.kind == "dot" and i.kind in ("valu", "trans", "dot", "mfma", "vmem", "ds") and wv & (i.rd | i.wr):
                    same = i.kind == "dot" and i.mn == p.mn
                    if same:
                        ops = split_ops(i.text.split(";")[0].strip().partition(" ")[2])
                        ab = set(regs_of(ops[1])) | set(regs_of(ops[2].split(" ")[0]))
                        if wv & ab: req(3)
                    else: req(3)
                if i.kind in ("valu", "trans", "dot") and ws & i.rd: req(2)
                if i.mn.startswith(("v_readlane", "v_writelane")) and ws & i.rd: req(4)
                if i.kind == "vmem" and ws & i.rd: req(5)
                if i.mn.startswith(("v_readlane", "v_readfirstlane")) and wv & i.rd: req(1)
                if i.mn.startswith("v_permlane") and wv & i.rd: req(2)
                if i.dpp and wv & i.rd: req(2)
            if p.kind == "mfma":
                D = set(p.D)
                if i.kind in ("valu", "trans", "dot") and D & (i.rd | i.wr): req(12)
                if i.kind in ("vmem", "ds") and D & (i.rd | i.wr): req(12)
                if i.kind == "mfma":
                    if D & (set(i.A) | set(i.B)): req(12)
                    if D & set(i.C) and i.C != p.D: req(10)
                    if D & set(i.D) and i.C != p.D: req(10)
                if i.kind in ("valu", "trans", "dot") and set(p.C) & i.wr: req(7)
            if p.kind == "salu" and "m0" in p.wr and i.kind == "vmem" and i.lds: req(1)
            if p.kind == "salu" and "m0" in p.wr and i.mn.startswith(("v_readlane", "v_writelane")): req(1)
            if p.kind == "vmem" and p.wide and p.D and set(p.D) & i.wr: req(2)
            dist += p.states
            if dist > 24: break
        return need
    def _check_pending(self, i):
        touched = i.rd | i.wr
        for lst, nm in ((self.vm, "vmem"), (self.lg, "lds")):
            for tag, dst in lst:
                if dst & touched:
                    raise RuntimeError(f"instruction touches pending {nm} destination ({tag}): {i.text}")
    def __call__(self, text, tag=None):
        i = parse(text)
        self._check_pending(i)
        n = self.need(i)
        while n > 0:
            k = min(n, 16)
            self._push(parse(f"s_nop {k-1}")); n -= k
        self._push(i)
        if i.kind == "vmem": self.vm.append((tag, set(i.wr)))
        elif i.kind == "ds":
            self.lg.append((tag, set(i.wr)))
            assert not self.smem, "ds op with smem outstanding"
        elif i.kind == "smem": self.smem = True; self.lg.append(("smem", set(i.wr)))
        return i
    def _push(self, i):
        self.lines.append("    " + i.text); self.hist.append(i); self.nins += 1
        self.stats[i.kind] = self.stats.get(i.kind, 0) + 1
        if len(self.hist) > 40: self.hist.pop(0)
    def wait(self, vm=None, lg=None):
        parts = []
        if vm is not None:
            if vm == 0: n = 0
            else:
                idx = [k for k, (t, _) in enumerate(self.vm) if t == vm or (isinstance(t, tuple) and vm in t)]
                n = len(self.vm) - 1 - idx[-1] if idx else None
            if n is not None and n < len(self.vm):
                n = min(n, 63)
                parts.append(f"vmcnt({n})"); self.vm = self.vm[len(self.vm) - n:] if n else []
        if lg is not None:
            if lg == 0 or self.smem: n = 0
            else:
                idx = [k for k, (t, _) in enumerate(self.lg) if t == lg]
                n = len(self.lg) - 1 - idx[-1] if idx else None
            if n is not None and n < len(self.lg):
                n = min(n, 15)
                parts.append(f"lgkmcnt({n})"); self.lg = self.lg[len(self.lg) - n:] if n else []
                if n == 0: self.smem = False
        if parts: self._push(parse("s_waitcnt " + " ".join(parts)))
    def has_lg(self, tag): return any(t == tag for t, _ in self.lg)
    def has_vm(self, tag): return any(t == tag for t, _ in self.vm)
    def text(self): return "\n".join(self.lines) + "\n"
```

```python
import sys, math, struct
from emit import Emitter

KN = "parallel_sum__sliding_local_dilated__geglu_ffn__prompt_kernel"
def f32(x): return "0x%08x" % struct.unpack("<I", struct.pack("<f", x))[0]

SLOT = 20544
RING = 0
XST = 4 * SLOT
HALO = XST + 65536
LDS_BYTES = 163840
UPOFF_F = 10272
KX, HK, VX, HV = HALO, HALO + 4096, HALO + 6144, HALO + 10240

sW = "s3"
SRD_X, SRD_WA, SRD_WG, SRD_WU, SRD_WS, SRD_DN, SRD_WO, SRD_OUT, SRD_DBG = [f"s[{4*i}:{4*i+3}]" for i in range(1, 10)]
sI, sJJ, sCG, sXCD, sS = "s40", "s41", "s42", "s43", "s44"
sROT, sK0, sKC, sT0X = "s45", "s46", "s47", "s48"
sO0, sO1, sO2, sO3 = "s49", "s50", "s51", "s52"
sMSK, sONES = "s53", "s54"
sLW, sA2 = "s55", "s56"
sT, sU, sV = "s57", "s58", "s59"
sXL, sRL = "s60", "s61"
sDN, sWO = "s62", "s63"
sK2 = "s[84:85]"; sC2 = "s[86:87]"
sT2, sN2 = "s88", "s89"
sFLAG = "s90"; sCNT = "s91"
sTS = 92

vL = "v0"
vA, vB, vG0, vG1, vH, vHX, vHXb = "v1", "v2", "v3", "v4", "v5", "v6", "v7"
vD = ["v8", "v9", "v10", "v11", "v12"]
vR, vNMR = "v13", "v14"
vW2 = "v15"
ACC0 = 16
def acc(b, lo=0, hi=15): return f"v[{ACC0+16*b+lo}:{ACC0+16*b+hi}]"
def accr(b, r): return f"v{ACC0+16*b+r}"
XN = [192, 196]
TMP = 200
MSK = 208
EX = 228
NF = 12
AFR = 112
def vr(lo, n): return f"v[{lo}:{lo+n-1}]" if n > 1 else f"v{lo}"
def ar(lo, n): return f"a[{lo}:{lo+n-1}]" if n > 1 else f"a{lo}"

class Opt:
    split = False
    ts = False
    st_pol = "sc1"
    ld_pol = "sc1"
    flag = "atomic"
    code_lines = 512
    a2_depth = 14
    maxfill = 6
    bd = 3

def stamp(e, o, k):
    if o.ts:
        assert not e.lg or True
        e.wait(lg=0)
        e(f"s_memtime s[{sTS+2*0}:{sTS+2*0+1}]"); e.wait(lg=0)
        e(f"v_writelane_b32 v255, s{sTS}, {k}")

def srd(e, reg, plo, nbytes):
    b = int(reg[2:].split(":")[0])
    e(f"s_mov_b32 s{b}, s{plo}"); e(f"s_mov_b32 s{b+1}, s{plo+1}")
    e(f"s_mov_b32 s{b+2}, {nbytes}"); e(f"s_mov_b32 s{b+3}, 0x20000")

def setup(e, o, entry):
    e(f"s_cmp_ge_u32 s2, 256"); e("s_cbranch_scc1 L_end_" + entry)
    e("s_load_dwordx16 s[64:79], s[0:1], 0"); e("s_load_dwordx4 s[80:83], s[0:1], 64")
    if o.ts:
        e("v_mov_b32 v255, 0")
        e(f"s_memrealtime s[{sTS+2}:{sTS+3}]")
        e(f"s_memtime s[{sTS}:{sTS+1}]")
    e("v_lshrrev_b32 v1, 6, v0"); e("v_and_b32 v0, 63, v0")
    e(f"v_readfirstlane_b32 {sW}, v1")
    e(f"s_and_b32 {sXCD}, s2, 7"); e(f"s_lshr_b32 {sS}, s2, 3")
    e(f"s_lshr_b32 {sCG}, {sXCD}, 1"); e(f"s_lshr_b32 {sJJ}, {sS}, 3")
    e(f"s_and_b32 {sT}, {sXCD}, 1"); e(f"s_lshl_b32 {sT}, {sT}, 3"); e(f"s_and_b32 {sI}, {sS}, 7"); e(f"s_add_u32 {sI}, {sI}, {sT}")
    e(f"s_getpc_b64 s[{sTS+4}:{sTS+5}]")
    e(f"s_lshl_b32 {sT}, {sS}, 2"); e(f"s_add_u32 {sT}, {sT}, {sW}"); e(f"s_lshl_b32 {sT}, {sT}, 2")
    e(f"v_and_b32 v1, 3, v0"); e(f"v_add_u32 v1, {sT}, v1"); e(f"v_min_u32 v1, {o.code_lines-1}, v1"); e("v_lshlrev_b32 v1, 7, v1")
    e(f"global_load_dword v254, v1, s[{sTS+4}:{sTS+5}]", tag="pf")
    e(f"s_mov_b32 {sMSK}, 0xffff0000"); e(f"s_mov_b32 {sONES}, 0x3f803f80")
    e(f"s_lshl_b32 {sXL}, {sW}, 14"); e(f"s_add_u32 {sXL}, {sXL}, {XST}")
    e(f"s_mul_i32 {sRL}, {sW}, {SLOT}")
    e(f"s_and_b32 {sT2}, {sS}, 3"); e(f"s_lshl_b32 {sT}, {sXCD}, 2"); e(f"s_add_u32 {sT2}, {sT2}, {sT}")
    e(f"s_lshr_b32 {sN2}, {sS}, 2")
    e(f"s_mul_i32 {sDN}, {sW}, {448*896}"); e(f"s_mul_i32 {sWO}, {sW}, {112*896}")
    e("v_lshrrev_b32 v1, 3, v0"); e(f"v_mul_u32_u24 v1, 896, v1")
    e("v_and_b32 v2, 7, v0"); e("v_lshrrev_b32 v3, 2, v0"); e("v_and_b32 v3, 4, v3"); e("v_xor_b32 v2, v2, v3")
    e(f"v_lshl_add_u32 {vW2}, v2, 4, v1")
    e(f"s_lshl_b32 {sT}, {sN2}, 7"); e(f"s_cmp_ge_u32 {sS}, 28"); e(f"s_cselect_b32 {sT}, 0x80000000, {sT}")
    e(f"v_add_u32 {vW2}, {sT}, {vW2}")
    e.wait(lg=0)
    if o.ts: e(f"v_writelane_b32 v255, s{sTS}, 0"); e(f"v_writelane_b32 v255, s{sTS+2}, 15")
    srd(e, SRD_X, 64, 1835008); srd(e, SRD_WS, 82, 32*144*2048); srd(e, SRD_DN, 76, 1605632); srd(e, SRD_WO, 68, 401408)
    srd(e, SRD_OUT, 78, 1835008); srd(e, SRD_DBG, 80, 256)

def x_dma(e, n):
    for q in range(4):
        e(f"s_add_u32 {sT}, {sXL}, {(n % 4) * 4096 + q * 1024}"); e(f"s_mov_b32 m0, {sT}")
        if q: e(f"s_add_u32 {sU}, {sO0}, {q * 14336}")
        e(f"buffer_load_dwordx4 {vD[q & 1]}, {SRD_X}, {sU if q else sO0} offen lds", tag=f"x{n}")
    e(f"s_add_u32 {sROT}, {sROT}, 128"); e(f"s_cmp_eq_u32 {sROT}, 896"); e(f"s_cselect_b32 {sROT}, 0, {sROT}")
    e(f"s_add_u32 {sO0}, {sT0X}, {sROT}")

def w_dma_groups(typ, it):
    g = []
    slot = RING + (it % 4) * SLOT
    adv = [f"s_add_u32 {sK0}, {sK0}, 32", f"s_cmp_eq_u32 {sK0}, 448", f"s_cselect_b32 {sK0}, 0, {sK0}"]
    if typ == "F":
        for q in range(5):
            pre = [f"s_mul_i32 {sO1}, {sK0}, 3584"] if q == 0 else []
            g.append(pre + [f"s_add_u32 {sT}, {sLW}, {slot + q * 1024}", f"s_mov_b32 m0, {sT}"] + (adv if q == 0 else []) +
                     [(f"buffer_load_dwordx4 {vD[q]}, {SRD_WA}, {sO1} offen lds", f"w{it}")])
    else:
        for arr in range(5):
            pre = []
            if arr == 0: pre = [f"s_mul_i32 {sO1}, {sK0}, 2688", f"s_mul_i32 {sO2}, {sK0}, 3584"]
            if arr in (1, 2): pre = [f"s_add_u32 {sO1}, {sO1}, 896"]
            dst = slot + arr * 4096 + (32 if arr == 4 else 0)
            ld = (f"buffer_load_dwordx4 {vD[0]}, {SRD_WA}, {sO1} offen lds" if arr < 3 else
                  f"buffer_load_dwordx4 {vD[1]}, {SRD_WG if arr == 3 else SRD_WU}, {sO2} offen lds")
            g.append(pre + [f"s_add_u32 {sT}, {sLW}, {dst}", f"s_mov_b32 m0, {sT}"] + (adv if arr == 0 else []) + [(ld, f"w{it}")])
    return g

def w2_rows(kl):
    if kl < 20: return SRD_DN, sDN, 128 + 16 * kl
    b, r = divmod(kl - 20, 8)
    if r < 4: return SRD_DN, sDN, 64 * b + 16 * r
    hd, s = divmod(r - 4, 2)
    return SRD_WO, sWO, 28 * (2 * b + hd) + 16 * s

W2_SLOTS = 18
def w2_slot(kl):
    s = kl % W2_SLOTS
    return (sXL, s * 2048, 0) if s < 8 else (sRL, (s - 8) * 2048, 1)

def w2_dma_groups(kl):
    srd_, base, row = w2_rows(kl)
    lb, lo, _ = w2_slot(kl)
    g = []
    for h in range(2):
        g.append([f"s_add_u32 {sT}, {lb}, {lo + h * 1024}", f"s_mov_b32 m0, {sT}", f"s_add_u32 {sU}, {base}, {(row + 8 * h) * 896}",
                  (f"buffer_load_dwordx4 {vW2}, {srd_}, {sU} offen lds", f"v{kl}")])
    return g

def emit_group(e, g):
    for x in g:
        if isinstance(x, tuple): e(x[0], tag=x[1])
        else: e(x)

def prologue(e, o, typ):
    B = typ == "B"
    if B:
        srd(e, SRD_WA, 66, 1204224); srd(e, SRD_WG, 72, 1605632); srd(e, SRD_WU, 74, 1605632)
    else:
        e(f"s_cmp_ge_u32 {sW}, 2"); e("s_cselect_b32 s8, s74, s72"); e("s_cselect_b32 s9, s75, s73")
        e("s_mov_b32 s10, 1605632"); e("s_mov_b32 s11, 0x20000")
    e(f"s_lshl_b32 {sT}, {sJJ}, 1"); e(f"s_add_u32 {sT}, {sT}, {sI}")
    for _ in range(3):
        e(f"s_cmp_ge_u32 {sT}, 7"); e(f"s_cselect_b32 {sU}, 7, 0"); e(f"s_sub_u32 {sT}, {sT}, {sU}")
    e(f"s_lshl_b32 {sROT}, {sT}, 7"); e(f"s_lshl_b32 {sK0}, {sT}, 6"); e(f"s_lshl_b32 {sKC}, {sT}, 7")
    e(f"s_mul_i32 {sT0X}, {sI}, {128*896}"); e(f"s_add_u32 {sO0}, {sT0X}, {sROT}")
    e(f"s_lshr_b32 {sT}, {sW}, 1"); e(f"s_lshl_b32 {sT}, {sT}, 6"); e(f"s_and_b32 {sU}, {sW}, 1"); e(f"s_add_u32 {sT}, {sT}, {sU}")
    e("v_lshrrev_b32 v1, 3, v0"); e(f"v_lshl_add_u32 v1, v1, 1, {sT}"); e("v_mul_u32_u24 v1, 896, v1")
    e("v_and_b32 v2, 7, v0"); e("v_lshrrev_b32 v3, 4, v0"); e("v_xor_b32 v2, v2, v3")
    e(f"v_lshl_add_u32 {vD[0]}, v2, 4, v1"); e(f"v_xor_b32 {vD[1]}, 64, {vD[0]}")
    for n in range(4): x_dma(e, n)
    if B:
        for q in range(4):
            t = EX
            e(f"v_add_u32 v{t}, {64*q}, v0")
            e(f"v_mul_u32_u24 v{t+1}, 1150, v{t}"); e(f"v_lshrrev_b32 v{t+1}, 16, v{t+1}")
            e(f"v_mul_u32_u24 v{t+2}, 57, v{t+1}"); e(f"v_sub_u32 v{t+2}, v{t}, v{t+2}")
            e(f"s_lshl_b32 {sT}, {sW}, 2"); e(f"v_add_u32 v{t+1}, {sT}, v{t+1}")
            e(f"v_and_b32 v{t+3}, 7, v{t+1}"); e(f"v_lshlrev_b32 v{t+3}, 1, v{t+3}")
            e(f"v_lshrrev_b32 v{t+1}, 3, v{t+1}"); e(f"v_sub_u32 v{t+3}, v{t+3}, v{t+1}"); e(f"v_add_u32 v{t+3}, -15, v{t+3}")
            e(f"v_mul_i32_i24 v{t+3}, 896, v{t+3}"); e(f"v_lshl_add_u32 v{t+3}, v{t+2}, 4, v{t+3}")
            e(f"v_add_u32 v{t+3}, {sT0X}, v{t+3}")
            e(f"v_cmp_gt_i32 vcc, 0, v{t+3}"); e(f"v_mov_b32 v{t+4}, 0x80000000"); e(f"v_cndmask_b32 v{t+3}, v{t+3}, v{t+4}, vcc")
            e(f"v_cmp_eq_u32 vcc, 56, v{t+2}"); e(f"v_cndmask_b32 v{t+3}, v{t+3}, v{t+4}, vcc")
            e(f"s_mul_i32 {sT}, {sW}, {4*912}"); e(f"s_add_u32 {sT}, {sT}, {HALO + q*1024}"); e(f"s_mov_b32 m0, {sT}")
            if q == 3: e("s_mov_b32 exec_hi, 15")
            e(f"buffer_load_dwordx4 v{t+3}, {SRD_X}, 0 offen lds", tag="halo")
            if q == 3: e("s_mov_b32 exec_hi, -1")
    XR = [EX + 8 + k for k in range(4)]
    e("v_and_b32 v1, 31, v0"); e("v_lshrrev_b32 v2, 5, v0"); e("v_bfe_u32 v3, v0, 1, 3"); e("v_xor_b32 v2, v2, v3")
    e("v_lshlrev_b32 v1, 7, v1"); e(f"v_lshl_add_u32 v1, v2, 4, v1"); e(f"v_add_u32 v{XR[0]}, {sXL}, v1")
    for k in range(1, 4): e(f"v_xor_b32 v{XR[k]}, {32*k}, v{XR[0]}")
    WD = [EX + 12 + k for k in range(5)]
    if B:
        e(f"s_lshl_b32 {sT}, {sW}, 3"); e("v_lshrrev_b32 v1, 3, v0"); e(f"v_add_u32 v1, {sT}, v1")
        e("v_and_b32 v2, 7, v0"); e("v_lshrrev_b32 v3, 2, v0"); e("v_and_b32 v3, 4, v3"); e("v_xor_b32 v2, v2, v3")
        e(f"s_lshl_b32 {sT}, {sCG}, 1"); e(f"s_add_u32 {sT}, {sT}, {sJJ}"); e(f"s_sub_u32 {sT}, {sT}, 2"); e(f"s_mul_i32 {sT}, {sT}, 112")
        e("v_mul_u32_u24 v3, 2688, v1"); e(f"v_lshl_add_u32 v3, v2, 4, v3"); e(f"v_add_u32 v3, {sT}, v3")
        e("v_cmp_eq_u32 vcc, 7, v2"); e("v_mov_b32 v4, 0x80000000"); e(f"v_cndmask_b32 v{WD[0]}, v3, v4, vcc")
        e(f"s_mul_i32 {sT}, {sCG}, 896"); e(f"s_sub_u32 {sU}, {sJJ}, 2"); e(f"s_lshl_b32 {sU}, {sU}, 7"); e(f"s_add_u32 {sT}, {sT}, {sU}")
        e("v_mul_u32_u24 v3, 3584, v1"); e(f"v_lshl_add_u32 v3, v2, 4, v3"); e(f"v_add_u32 v{WD[1]}, {sT}, v3")
        e(f"s_lshl_b32 {sLW}, {sW}, 10")
    else:
        e(f"s_and_b32 {sU}, {sW}, 1"); e(f"s_mul_i32 {sV}, {sU}, 320")
        e(f"s_mul_i32 {sT}, {sCG}, 896"); e(f"s_mul_i32 {sO1}, {sJJ}, 320"); e(f"s_add_u32 {sT}, {sT}, {sO1}"); e(f"s_add_u32 {sT}, {sT}, 256")
        for q in range(5):
            e(f"v_add_u32 v1, {sV}, v0")
            if q: e(f"v_add_u32 v1, {64*q}, v1")
            e("v_mul_u32_u24 v2, 3277, v1"); e("v_lshrrev_b32 v2, 16, v2")
            e("v_mul_u32_u24 v3, 20, v2"); e("v_sub_u32 v3, v1, v3")
            e("v_mul_u32_u24 v2, 3584, v2"); e(f"v_lshl_add_u32 v2, v3, 4, v2"); e(f"v_add_u32 v{WD[q]}, {sT}, v2")
        e(f"s_mul_i32 {sLW}, {sU}, 5120"); e(f"s_lshr_b32 {sU}, {sW}, 1"); e(f"s_mul_i32 {sU}, {sU}, {UPOFF_F}"); e(f"s_add_u32 {sLW}, {sLW}, {sU}")
    e("v_lshrrev_b32 v8, 5, v0") if False else None
    t = EX + 17
    e(f"v_lshrrev_b32 v{t}, 5, v0"); e(f"v_bfe_u32 v{t+1}, v0, 2, 2"); e(f"v_lshl_add_u32 v{t}, v{t}, 3, v{t+1}")
    e(f"v_bfe_u32 v{t+2}, v0, 4, 1")
    e(f"v_and_b32 v{t+3}, 3, v0"); e(f"v_lshlrev_b32 v{t+3}, 3, v{t+3}")
    if B:
        e(f"v_bfe_u32 v{t+4}, v0, 3, 1"); e(f"v_lshlrev_b32 v{t+4}, 6, v{t+4}")
        e(f"v_lshlrev_b32 v{t}, 7, v{t}")
        e(f"v_lshl_add_u32 v{t+5}, v{t+2}, 5, v{t+3}")
        e(f"v_xor_b32 {vA}, v{t+5}, v{t+4}"); e(f"v_add_u32 {vA}, {vA}, v{t}")
        e(f"v_add_u32 v{t+5}, 56, v{t+5}"); e(f"v_xor_b32 {vB}, v{t+5}, v{t+4}"); e(f"v_add_u32 {vB}, {vB}, v{t}")
        e(f"v_mul_u32_u24 v{t+5}, 4128, v{t+2}"); e(f"v_add3_u32 v{t+5}, v{t+5}, v{t+3}, v{t}")
        e(f"v_add_u32 {vG0}, v{t+5}, v{t+4}"); e(f"v_xor_b32 v{t+4}, 64, v{t+4}"); e(f"v_add_u32 {vG1}, v{t+5}, v{t+4}")
        e(f"s_cmp_ge_u32 {sW}, 2"); e(f"s_cselect_b64 vcc, -1, 0"); e(f"v_cndmask_b32 {vH}, {vA}, {vB}, vcc")
        e(f"s_and_b32 {sT}, {sW}, 1"); e(f"s_add_u32 {sT}, {sT}, 1"); e(f"s_lshl_b32 {sT}, {sT}, 12"); e(f"v_add_u32 {vH}, {sT}, {vH}")
        e(f"v_and_b32 v{t}, 15, v0"); e(f"v_mul_u32_u24 v{t}, 912, v{t}"); e(f"v_lshrrev_b32 v{t+1}, 5, v0")
        e(f"v_lshl_add_u32 v{t}, v{t+1}, 4, v{t}"); e(f"v_add_u32 {vHXb}, {HALO}, v{t}")
        e(f"v_and_b32 v{t}, 31, v0"); e(f"v_lshrrev_b32 v{t+1}, 5, v0"); e(f"v_lshlrev_b32 v{t+1}, 2, v{t+1}")
        e(f"v_sub_u32 v{t}, v{t}, v{t+1}")
        e(f"v_mov_b32 v{t+2}, {f32(-1e30)}")
        for r in range(16):
            i0 = 8 * (r >> 2) + (r & 3)
            e(f"v_subrev_u32 v{t+1}, {i0}, v{t}"); e(f"v_cmp_gt_u32 vcc, 8, v{t+1}"); e(f"v_cndmask_b32 v{MSK+r}, v{t+2}, 0, vcc")
        e(f"s_cmp_eq_u32 {sI}, 0"); e(f"s_cselect_b32 {sT}, 2, 0"); e(f"s_cmp_lt_u32 {sW}, {sT}"); e(f"s_cselect_b32 {sT}, 100, 1")
        e(f"v_add_u32 v{t}, {sT}, v{t}")
        for r in range(4):
            e(f"v_cmp_ge_i32 vcc, {r}, v{t}"); e(f"v_cndmask_b32 v{MSK+16+r}, v{t+2}, 0, vcc")
    else:
        e(f"v_mul_u32_u24 v{t}, 320, v{t}"); e(f"v_mul_u32_u24 v{t+2}, {UPOFF_F}, v{t+2}"); e(f"v_add3_u32 {vA}, v{t}, v{t+2}, v{t+3}")
    S = [TMP + k for k in range(4)]
    for k in range(4): e(f"v_mov_b32 v{S[k]}, 0")
    def x_consume(n):
        e.wait(vm=f"x{n}")
        for kk in range(4):
            e(f"ds_read_b128 {vr(ACC0 + 4*kk + 16*(n & 1), 4)}, v{XR[kk]} offset:{(n % 4) * 4096}", tag=f"xs{n}")
        for kk in range(4):
            e(f"ds_read_b128 {ar(16*n + 4*kk, 4)}, v{XR[kk]} offset:{(n % 4) * 4096}", tag=f"xa{n}")
    def x_stats(n):
        e.wait(lg=f"xs{n}")
        for d in range(16):
            r = ACC0 + 16 * (n & 1) + d
            e(f"v_dot2_f32_bf16 v{S[d & 1]}, v{r}, v{r}, v{S[d & 1]}")
            e(f"v_dot2_f32_bf16 v{S[2 + (d & 1)]}, v{r}, {sONES}, v{S[2 + (d & 1)]}")
    def halo_norm():
        h = ACC0 + 32
        t = ACC0 + 48
        e.wait(vm="halo")
        e(f"v_lshrrev_b32 v{t}, 4, v0"); e(f"s_lshl_b32 {sT}, {sW}, 2"); e(f"v_add_u32 v{t}, {sT}, v{t}"); e(f"v_mul_u32_u24 v{t}, 912, v{t}")
        e(f"v_and_b32 v{t+1}, 15, v0"); e(f"v_mul_u32_u24 v{t+1}, 56, v{t+1}"); e(f"v_add_u32 v{t}, v{t}, v{t+1}"); e(f"v_add_u32 v{t}, {HALO}, v{t}")
        for m in range(7): e(f"ds_read_b64 {vr(h + 2*m, 2)}, v{t} offset:{8*m}", tag="hr")
        e(f"v_mov_b32 v{t+1}, 0"); e(f"v_mov_b32 v{t+2}, 0")
        e.wait(lg="hr")
        for d in range(14):
            e(f"v_dot2_f32_bf16 v{t+1}, v{h+d}, v{h+d}, v{t+1}"); e(f"v_dot2_f32_bf16 v{t+2}, v{h+d}, {sONES}, v{t+2}")
        for sh in (8, 4, 2, 1):
            e(f"v_add_f32_dpp v{t+1}, v{t+1}, v{t+1} row_ror:{sh} row_mask:0xf bank_mask:0xf")
            e(f"v_add_f32_dpp v{t+2}, v{t+2}, v{t+2} row_ror:{sh} row_mask:0xf bank_mask:0xf")
        finish_stats(e, t + 1, t + 2, t + 3, t + 4, t + 5)
        for d in range(14):
            e(f"v_lshlrev_b32 v{t+6}, 16, v{h+d}"); e(f"v_and_b32 v{t+7}, {sMSK}, v{h+d}")
            e(f"v_fma_f32 v{t+6}, v{t+6}, v{t+3}, v{t+4}"); e(f"v_fma_f32 v{t+7}, v{t+7}, v{t+3}, v{t+4}")
            e(f"v_cvt_pk_bf16_f32 v{h+d}, v{t+6}, v{t+7}")
        for m in range(7): e(f"ds_write_b64 v{t}, {vr(h + 2*m, 2)} offset:{8*m}", tag="hw")
    for n in range(3):
        x_consume(n); e.wait(lg=f"xa{n}"); x_dma(e, n + 4); x_stats(n)
    for k in range(5 if not B else 2): e(f"v_mov_b32 {vD[k]}, v{WD[k]}")
    for it in range(4):
        for g in w_dma_groups(typ, it): emit_group(e, g)
    stamp(e, o, 1)
    if B: halo_norm()
    for n in range(3, 7):
        x_consume(n); x_stats(n)
    e(f"v_add_f32 v{S[0]}, v{S[0]}, v{S[1]}"); e(f"v_add_f32 v{S[2]}, v{S[2]}, v{S[3]}")
    e(f"v_mov_b32 v{S[1]}, v{S[0]}"); e(f"v_mov_b32 v{S[3]}, v{S[2]}")
    e(f"v_permlane32_swap_b32 v{S[0]}, v{S[1]}"); e(f"v_permlane32_swap_b32 v{S[2]}, v{S[3]}")
    e(f"v_add_f32 v{S[0]}, v{S[0]}, v{S[1]}"); e(f"v_add_f32 v{S[2]}, v{S[2]}, v{S[3]}")
    finish_stats(e, S[0], S[2], int(vR[1:]), int(vNMR[1:]), S[1])
    e.wait(lg=0)
    stamp(e, o, 2)

def finish_stats(e, sq, sm, r, nmr, t):
    e(f"v_mul_f32 v{sm}, {f32(1/448)}, v{sm}"); e(f"v_mul_f32 v{sq}, {f32(1/448)}, v{sq}")
    e(f"v_fma_f32 v{sq}, -v{sm}, v{sm}, v{sq}"); e(f"v_max_f32 v{sq}, 0, v{sq}"); e(f"v_add_f32 v{sq}, {f32(1e-5)}, v{sq}")
    e(f"v_rsq_f32 v{r}, v{sq}"); e(f"v_mul_f32 v{nmr}, -v{sm}, v{r}") if False else None
    e(f"v_mul_f32 v{t}, v{sm}, v{r}"); e(f"v_sub_f32 v{nmr}, 0, v{t}")

def xn_ops(ks):
    b = XN[ks & 1]; t = TMP
    ops = [f"v_accvgpr_read_b32 v{t+4+j}, a{4*ks+j}" for j in range(4)]
    ops += [f"v_lshlrev_b32 v{t+j}, 16, v{t+4+j}" for j in range(4)]
    ops += [f"v_and_b32 v{t+4+j}, {sMSK}, v{t+4+j}" for j in range(4)]
    ops += [f"v_fma_f32 v{t+j}, v{t+j}, {vR}, {vNMR}" for j in range(8)]
    ops += [f"v_cvt_pk_bf16_f32 v{b+j}, v{t+j}, v{t+4+j}" for j in range(4)]
    return ops

def main_loop(e, o, typ, w2_pref):
    B = typ == "B"
    frags = []; mf = []
    for it in range(14):
        so = (it % 2) * SLOT
        for kk in range(2):
            ks = 2 * it + kk
            xn = vr(XN[ks & 1], 4)
            def add(reads):
                frags.append((it, reads)); return len(frags) - 1
            def tr(base, off): return [("ds_read_b64_tr_b16", base, off(m), 2 * m, 2) for m in range(2)]
            if B:
                for b in range(10):
                    if b < 6: f = add(tr(vA if b < 3 else vB, lambda m: so + (b % 3) * 4096 + (16 * kk + 4 * m) * 128))
                    else: f = add(tr(vG0 if b < 8 else vG1, lambda m: so + 12288 + 32 * (b & 1) + (16 * kk + 4 * m) * 128))
                    mf.append((ks, b, f, None, b in (2, 5), xn))
                f = add(tr(vH, lambda m: so + (16 * kk + 4 * m) * 128))
                f2 = add([("ds_read_b128", vHX, 32 * kk, 0, 4)])
                mf.append((ks, 10, f, f2, True, None))
            else:
                for b in range(10):
                    f = add(tr(vA, lambda m: so + (16 * kk + 4 * m) * 320 + 32 * b))
                    mf.append((ks, b, f, None, False, xn))
    nb = 11 if B else 10
    last_use = {}
    for mi, (ks, b, f, f2, sw, xn) in enumerate(mf):
        last_use[f] = mi
        if f2 is not None: last_use[f2] = mi
    def freg(f): return AFR + 4 * (f % NF)
    for op in xn_ops(0): e(op)
    e.wait(vm="w0", lg=0); e("s_barrier")
    stamp(e, o, 3)
    opened = 0
    rq = [(f, r) for f, (it, reads) in enumerate(frags) for r in reads]
    rpos = 0
    dmaq = []
    bar_at = None
    base_slab = -1
    w2n = 0
    xq = []
    def open_bases(slab):
        bases = [vA, vB, vG0, vG1, vH] if B else [vA]
        if slab % 4 == 2:
            for v in bases: e(f"v_add_u32 {v}, {2*SLOT}, {v}")
        elif slab % 4 == 0 and slab:
            for v in bases: e(f"v_subrev_u32 {v}, {2*SLOT}, {v}")
        if B:
            e(f"v_add_u32 {vHX}, {sKC}, {vHXb}")
            e(f"s_add_u32 {sKC}, {sKC}, 64"); e(f"s_cmp_eq_u32 {sKC}, 896"); e(f"s_cselect_b32 {sKC}, 0, {sKC}")
    for mi, (ks, b, f, f2, sw, xn) in enumerate(mf):
        if b == 0 and ks + 1 < 28: xq = xn_ops(ks + 1)
        fill = 0
        if bar_at is not None and mi >= bar_at:
            nxt = opened + 1
            e.wait(vm=(f"w{nxt}" if nxt < 14 else None), lg=0); e("s_barrier"); fill += 2
            opened = nxt; bar_at = None
            if nxt + 3 < 14: dmaq += w_dma_groups(typ, nxt + 3)
            elif w2_pref:
                if nxt < 14:
                    for _ in range(2):
                        if w2n < 8: dmaq += w2_dma_groups(w2n); w2n += 1
        lim = 4 if mi > 0 else 14
        nr = 0
        while rpos < len(rq) and nr < lim and (fill < o.maxfill or mi == 0):
            ff, (mn, base, off, sub, n) = rq[rpos]
            slab = frags[ff][0]
            if slab > opened: break
            if ff >= NF and last_use[ff - NF] >= mi: break
            if len(e.lg) >= 14: break
            if slab != base_slab:
                open_bases(slab); base_slab = slab; fill += 1
            e(f"{mn} {ar(freg(ff) + sub, n)}, {base} offset:{off}", tag=f"f{ff}")
            rpos += 1; nr += 1; fill += 1
            if rpos == len(rq) or frags[rq[rpos][0]][0] != slab: bar_at = mi + o.bd
        remaining_gaps = max(1, nb - 1 - b)
        quota = -(-len(xq) // remaining_gaps) if b < nb - 1 else len(xq)
        k = 0
        while xq and (k < quota or fill < o.maxfill - 1):
            e(xq.pop(0)); k += 1; fill += 1
        if dmaq and fill < o.maxfill + 2:
            emit_group(e, dmaq.pop(0))
        e.wait(lg=f"f{f}")
        if f2 is not None: e.wait(lg=f"f{f2}")
        w = ar(freg(f), 4); x = xn if f2 is None else ar(freg(f2), 4)
        c = "0" if ks == 0 else acc(b)
        a_, b_ = (x, w) if sw else (w, x)
        e(f"v_mfma_f32_32x32x16_bf16 {acc(b)}, {a_}, {b_}, {c}")
    assert rpos == len(rq)
    if bar_at is not None:
        e.wait(lg=0); e("s_barrier")
    for g in dmaq: emit_group(e, g)
    if w2_pref:
        while w2n < W2_SLOTS:
            for g in w2_dma_groups(w2n): emit_group(e, g)
            w2n += 1
    stamp(e, o, 4)

K1 = -2.0 * math.sqrt(2.0 / math.pi) * math.log2(math.e)
K2 = K1 * 0.044715

def gelu_block(e, o, b, off):
    t = TMP
    g = lambda p: acc(b, 2*p, 2*p+1); u = lambda p: acc(b, 8+2*p, 9+2*p); tt = lambda p: vr(t + 2*p, 2)
    for p in range(4): e(f"v_pk_mul_f32 {tt(p)}, {g(p)}, {g(p)}")
    for p in range(4): e(f"v_pk_fma_f32 {tt(p)}, {tt(p)}, {sK2}, {vr(EX, 2)}")
    for p in range(4): e(f"v_pk_mul_f32 {tt(p)}, {tt(p)}, {g(p)}")
    for p in range(4): e(f"v_pk_mul_f32 {u(p)}, {u(p)}, {g(p)}")
    for j in range(8): e(f"v_exp_f32 v{t+j}, v{t+j}")
    for p in range(4): e(f"v_pk_add_f32 {tt(p)}, {tt(p)}, 1.0 op_sel_hi:[1,0]")
    for j in range(8): e(f"v_rcp_f32 v{t+j}, v{t+j}")
    for p in range(4): e(f"v_pk_mul_f32 {u(p)}, {u(p)}, {tt(p)}")
    for p in range(4): e(f"v_cvt_pk_bf16_f32 {accr(b, p)}, {accr(b, 8+2*p)}, {accr(b, 9+2*p)}")
    a2_store(e, o, acc(b, 0, 3), off)

def a2_store(e, o, data, kl_rel):
    e(f"s_add_u32 {sT}, {sA2}, {kl_rel * 2048}")
    e(f"buffer_store_dwordx4 {data}, v{EX+2}, {SRD_WS}, {sT} offen {o.st_pol}", tag="st")

def epi_setup(e, typ):
    e(f"s_mov_b32 s84, {f32(K2)}"); e(f"s_mov_b32 s85, {f32(K2)}")
    e(f"v_mov_b32 v{EX}, {f32(K1)}"); e(f"v_mov_b32 v{EX+1}, {f32(K1)}")
    e(f"v_lshlrev_b32 v{EX+2}, 4, v0")
    e(f"s_lshr_b32 {sT}, {sW}, 1"); e(f"s_lshl_b32 {sA2}, {sI}, 1"); e(f"s_add_u32 {sA2}, {sA2}, {sT}"); e(f"s_mul_i32 {sA2}, {sA2}, 144")
    e(f"s_mul_i32 {sT}, {sCG}, 36"); e(f"s_add_u32 {sA2}, {sA2}, {sT}")
    if typ == "F": e(f"s_mul_i32 {sT}, {sJJ}, 10")
    else: e(f"s_lshl_b32 {sT}, {sJJ}, 3"); e(f"s_add_u32 {sT}, {sT}, 4")
    e(f"s_add_u32 {sA2}, {sA2}, {sT}"); e(f"s_lshl_b32 {sA2}, {sA2}, 1"); e(f"s_and_b32 {sT}, {sW}, 1"); e(f"s_add_u32 {sA2}, {sA2}, {sT}")
    e(f"s_lshl_b32 {sA2}, {sA2}, 10")

def epilogue_F(e, o):
    epi_setup(e, "F")
    for b in range(10): gelu_block(e, o, b, b)

def pack(e, b, r0, n, dst):
    for j in range(n): e(f"v_cvt_pk_bf16_f32 v{dst+j}, {accr(b, r0+2*j)}, {accr(b, r0+2*j+1)}")

def epilogue_B(e, o):
    epi_setup(e, "B")
    t = EX + 3
    e("s_mov_b32 exec_lo, 0")
    for hd in range(2):
        for r in range(12, 16): e(f"v_mov_b32 {accr(3*hd, r)}, 0")
    e("s_mov_b32 exec_lo, -1")
    for b in range(6): pack(e, b, 0, 8, ACC0 + 16 * b)
    e(f"v_and_b32 v{t}, 7, v0"); e(f"v_lshlrev_b32 v{t}, 6, v{t}"); e(f"v_lshrrev_b32 v{t+1}, 5, v0"); e(f"v_lshl_add_u32 v{t}, v{t+1}, 3, v{t}")
    e(f"s_lshl_b32 {sT}, {sW}, 10"); e(f"s_add_u32 {sT}, {sT}, {KX}"); e(f"v_add_u32 v{t+1}, {sT}, v{t}")
    e("s_mov_b32 exec_lo, 0xff000000"); e("s_mov_b32 exec_hi, 0xff000000")
    for hd in range(2):
        for s in range(2):
            for m in range(2):
                e(f"ds_write_b64 v{t+1}, {acc(3*hd+1, 4*s+2*m, 4*s+2*m+1)} offset:{hd*512 + 32*s + 16*m}", tag="ex")
    e("s_mov_b64 exec, -1")
    e(f"v_lshlrev_b32 v{t+2}, 3, v0"); e(f"s_lshl_b32 {sT}, {sW}, 10"); e(f"s_add_u32 {sT}, {sT}, {VX}"); e(f"v_add_u32 v{t+3}, {sT}, v{t+2}")
    for hd in range(2): e(f"ds_write_b64 v{t+3}, {acc(3*hd+2, 6, 7)} offset:{hd*512}", tag="ex")
    pack(e, 10, 8, 4, ACC0 + 160)
    e(f"s_lshr_b32 {sU}, {sW}, 1"); e(f"s_lshl_b32 {sU}, {sU}, 10")
    e(f"s_bitcmp1_b32 {sW}, 0"); e("s_cbranch_scc1 L_halo_v")
    ek = e.fork()
    ek(f"v_and_b32 v{t+4}, 31, v0"); ek(f"v_lshlrev_b32 v{t+4}, 1, v{t+4}"); ek(f"v_lshrrev_b32 v{t+5}, 5, v0"); ek(f"v_lshl_add_u32 v{t+4}, v{t+5}, 8, v{t+4}")
    ek(f"s_add_u32 {sU}, {sU}, {HK}"); ek(f"v_add_u32 v{t+4}, {sU}, v{t+4}")
    for j in range(4):
        row = 8 * (j >> 1) + 2 * (j & 1)
        ek(f"ds_write_b16 v{t+4}, {accr(10, j)} offset:{64*row}", tag="ex")
        ek(f"ds_write_b16_d16_hi v{t+4}, {accr(10, j)} offset:{64*(row+1)}", tag="ex")
    ek.wait(lg=0); ek("s_branch L_halo_done")
    ev = e.fork()
    ev(f"s_add_u32 {sU}, {sU}, {HV}"); ev(f"v_add_u32 v{t+4}, {sU}, v{t+2}")
    ev(f"ds_write_b64 v{t+4}, {acc(10, 2, 3)} offset:0", tag="ex")
    ev(f"ds_write_b64 v{t+4}, {acc(10, 0, 1)} offset:512", tag="ex")
    ev.wait(lg=0)
    e.lines += ek.lines; e.label("L_halo_v"); e.lines += ev.lines; e.label("L_halo_done")
    e.lg = []; e.hist = []
    e("s_barrier")
    e(f"s_and_b32 {sT}, {sW}, 1"); e(f"s_lshl_b32 {sU}, {sT}, 10"); e(f"s_lshl_b32 {sT}, {sT}, 9")
    e(f"s_sub_u32 {sV}, {HK + 512}, {sT}"); e(f"s_add_u32 {sO1}, {sU}, {KX}")
    e(f"s_add_u32 {sO2}, {sT}, {HV}"); e(f"s_add_u32 {sO3}, {sU}, {VX}")
    e(f"s_cmp_lt_u32 {sW}, 2"); e(f"s_cselect_b32 {sV}, {sV}, {sO1}"); e(f"s_cselect_b32 {sO2}, {sO2}, {sO3}"); e(f"s_cselect_b32 {sO1}, 2, 1"); e(f"s_lshl_b32 {sO1}, {sO1}, 9")
    e(f"v_add_u32 v{t}, {sV}, v{t}"); e(f"v_add_u32 v{t+1}, {sO1}, v{t}")
    e(f"v_add_u32 v{t+2}, {sO2}, v{t+2}"); e(f"v_add_u32 v{t+3}, {sO1}, v{t+2}")
    SD = [ACC0 + 160, ACC0 + 160]
    SP = [XN[0] - 0, None]
    for hd in range(2):
        for s in range(2):
            for m in range(2):
                e(f"ds_read_b64 {acc(3*hd, 8+4*s+2*m, 9+4*s+2*m)}, v{t+hd} offset:{32*s + 16*m}", tag=f"kp{hd}")
        e(f"ds_read_b64 {acc(3*hd+1, 10, 11)}, v{t+2+hd}", tag=f"kp{hd}")
        for r in (8, 9, 12, 13): e(f"v_mov_b32 {accr(3*hd+1, r)}, 0")
    c = 28 ** -0.5 * math.log2(math.e)
    e(f"s_mov_b32 s86, {f32(c)}"); e(f"s_mov_b32 s87, {f32(c)}")
    gel = [6, 7, 8, 9]
    for hd in range(2):
        q = lambda s: acc(3*hd, 4*s, 4*s+3); k = lambda s: acc(3*hd+1, 4*s, 4*s+3); v = lambda s: acc(3*hd+2, 4*s, 4*s+3)
        kp = lambda s: acc(3*hd, 8+4*s, 11+4*s)
        sd = vr(SD[hd], 16)
        gb = gel.pop(0); gelu_block(e, o, gb, gb - 6)
        gb2 = gel.pop(0); gelu_block(e, o, gb2, gb2 - 6)
        spb = ACC0 + 16 * gb
        e(f"v_mfma_f32_32x32x16_bf16 {sd}, {k(0)}, {q(0)}, {vr(MSK, 16)}")
        e(f"v_mfma_f32_32x32x16_bf16 {sd}, {k(1)}, {q(1)}, {sd}")
        e.wait(lg=f"kp{hd}")
        sp = vr(spb, 16)
        e(f"v_mfma_f32_32x32x16_bf16 {sp}, {kp(0)}, {q(0)}, {vr(MSK+4, 16)}")
        e(f"v_mfma_f32_32x32x16_bf16 {sp}, {kp(1)}, {q(1)}, {sp}")
        vals = [SD[hd] + r for r in range(16)] + [spb + 12 + r for r in range(4)]
        m0, m1 = TMP, TMP + 1
        e(f"v_max3_f32 v{m0}, v{vals[0]}, v{vals[1]}, v{vals[2]}"); e(f"v_max3_f32 v{m1}, v{vals[3]}, v{vals[4]}, v{vals[5]}")
        for j in range(6, 18, 4):
            e(f"v_max3_f32 v{m0}, v{m0}, v{vals[j]}, v{vals[j+1]}"); e(f"v_max3_f32 v{m1}, v{m1}, v{vals[j+2]}, v{vals[j+3]}")
        e(f"v_max3_f32 v{m0}, v{m0}, v{vals[18]}, v{vals[19]}"); e(f"v_max_f32 v{m0}, v{m0}, v{m1}")
        e(f"v_mov_b32 v{m1}, v{m0}"); e(f"v_permlane32_swap_b32 v{m0}, v{m1}"); e(f"v_max_f32 v{m0}, v{m0}, v{m1}")
        e(f"v_mul_f32 v{m0}, -1.0, v{m0}"); e(f"v_mul_f32 v{m0}, s86, v{m0}"); e(f"v_mov_b32 v{m1}, v{m0}")
        for j in range(0, 20, 2): e(f"v_pk_fma_f32 {vr(vals[j], 2)}, {vr(vals[j], 2)}, {sC2}, {vr(m0, 2)}")
        for j in range(20): e(f"v_exp_f32 v{vals[j]}, v{vals[j]}")
        s0 = TMP + 2
        e(f"v_pk_add_f32 {vr(s0, 2)}, {vr(vals[0], 2)}, {vr(vals[2], 2)}"); e(f"v_pk_add_f32 {vr(s0+2, 2)}, {vr(vals[4], 2)}, {vr(vals[6], 2)}")
        for j in range(8, 20, 4):
            e(f"v_pk_add_f32 {vr(s0, 2)}, {vr(s0, 2)}, {vr(vals[j], 2)}"); e(f"v_pk_add_f32 {vr(s0+2, 2)}, {vr(s0+2, 2)}, {vr(vals[j+2], 2)}")
        e(f"v_pk_add_f32 {vr(s0, 2)}, {vr(s0, 2)}, {vr(s0+2, 2)}"); e(f"v_add_f32 v{s0}, v{s0}, v{s0+1}")
        e(f"v_mov_b32 v{s0+1}, v{s0}"); e(f"v_permlane32_swap_b32 v{s0}, v{s0+1}"); e(f"v_add_f32 v{s0}, v{s0}, v{s0+1}")
        e(f"v_rcp_f32 v{s0}, v{s0}")
        for j in range(8): e(f"v_cvt_pk_bf16_f32 v{SD[hd]+j}, v{vals[2*j]}, v{vals[2*j+1]}")
        for j in range(2): e(f"v_cvt_pk_bf16_f32 {accr(3*hd+1, 14+j)}, v{vals[16+2*j]}, v{vals[17+2*j]}")
        e(f"v_mov_b32 v{s0+1}, v{s0}")
        od = vr(spb, 16)
        e(f"v_mfma_f32_32x32x16_bf16 {od}, {v(0)}, {vr(SD[hd], 4)}, 0")
        e(f"v_mfma_f32_32x32x16_bf16 {od}, {v(1)}, {vr(SD[hd]+4, 4)}, {od}")
        e(f"v_mfma_f32_32x32x16_bf16 {od}, {acc(3*hd+1, 8, 11)}, {acc(3*hd+1, 12, 15)}, {od}")
        for j in range(0, 16, 2): e(f"v_pk_mul_f32 {vr(spb+j, 2)}, {vr(spb+j, 2)}, {vr(s0, 2)}")
        e("s_mov_b32 exec_lo, 0")
        for r in range(12, 16): e(f"v_mov_b32 v{spb+r}, 0")
        e("s_mov_b32 exec_lo, -1")
        for j in range(8): e(f"v_cvt_pk_bf16_f32 {accr(3*hd, j)}, v{spb+2*j}, v{spb+2*j+1}")
        a2_store(e, o, acc(3*hd, 0, 3), 4 + 2*hd); a2_store(e, o, acc(3*hd, 4, 7), 5 + 2*hd)

def publish(e, o):
    stamp(e, o, 5)
    e.wait(vm=0, lg=0); e("s_barrier")
    stamp(e, o, 6)
    if o.split: return
    e(f"s_cmp_lg_u32 {sW}, 0"); e("s_cbranch_scc1 L_noflag_%d" % id(e))
    e(f"s_lshl_b32 {sT}, {sI}, 2"); e(f"s_add_u32 {sT}, {sT}, {sCG}"); e(f"s_lshl_b32 {sT}, {sT}, 2")
    e("s_mov_b64 exec, 1")
    if o.flag == "atomic":
        e(f"s_lshl_b32 {sU}, {sJJ}, 3"); e(f"s_lshl_b32 {sU}, 1, {sU}")
        e(f"v_mov_b32 v1, {sU}"); e(f"v_mov_b32 v2, {sT}")
        e(f"buffer_atomic_add v1, v2, {SRD_DBG}, 0 offen sc1", tag="flag")
    else:
        e(f"s_add_u32 {sT}, {sT}, {sJJ}")
        e(f"v_mov_b32 v1, 1"); e(f"v_mov_b32 v2, {sT}")
        e(f"buffer_store_byte v1, v2, {SRD_DBG}, 0 offen sc1", tag="flag")
    e("s_mov_b64 exec, -1")
    e.label("L_noflag_%d" % id(e))

def poll(e, o, mask, name):
    e(f"s_mov_b32 {sCNT}, 0")
    e.label(name)
    e(f"buffer_load_dword v1, v2, {SRD_DBG}, 0 offen sc1", tag="poll")
    e.wait(vm=0)
    e(f"v_readfirstlane_b32 {sFLAG}, v1")
    e(f"s_add_u32 {sCNT}, {sCNT}, 1")
    e(f"s_and_b32 {sT}, {sFLAG}, {mask}")
    e(f"s_cmp_eq_u32 {sT}, {mask}"); e(f"s_cbranch_scc1 {name}_ok")
    e(f"s_cmp_lt_u32 {sCNT}, 0x200000"); e(f"s_cbranch_scc1 {name}")
    e.label(name + "_ok")

def w2reg(kl, u):
    r = 8 * kl + 4 * u
    return ("a", r) if r < 256 else ("v", 96 + r - 256)

def phase2(e, o, npref, entry):
    e(f"s_cmp_ge_u32 {sS}, 28"); e(f"s_cbranch_scc1 L_fin_{entry}")
    for kl in range(npref, W2_SLOTS):
        for g in w2_dma_groups(kl): emit_group(e, g)
    tb = [4, 5, 6, 7]
    e("v_lshrrev_b32 v8, 5, v0"); e("v_bfe_u32 v9, v0, 2, 2"); e("v_lshl_add_u32 v8, v8, 2, v9"); e("v_lshlrev_b32 v8, 7, v8")
    e("v_bfe_u32 v9, v0, 4, 1"); e("v_and_b32 v10, 3, v0"); e("v_lshlrev_b32 v10, 3, v10"); e("v_lshl_add_u32 v9, v9, 5, v10")
    e("v_bfe_u32 v10, v0, 3, 1"); e(f"s_lshr_b32 {sT}, {sW}, 1"); e(f"v_xor_b32 v10, {sT}, v10"); e("v_lshlrev_b32 v10, 6, v10")
    e("v_add3_u32 v8, v8, v9, v10")
    e(f"v_add_u32 v4, {sXL}, v8"); e(f"v_add_u32 v6, {sRL}, v8"); e("v_xor_b32 v8, 64, v8"); e(f"v_add_u32 v5, {sXL}, v8"); e(f"v_add_u32 v7, {sRL}, v8")
    RX = 88
    e("v_and_b32 v8, 31, v0"); e(f"s_and_b32 {sT}, {sW}, 1"); e(f"s_lshl_b32 {sU}, {sT2}, 6"); e(f"s_add_u32 {sT}, {sT}, {sU}")
    e(f"v_lshl_add_u32 v8, v8, 1, {sT}"); e("v_mul_u32_u24 v8, 896, v8"); e("v_lshrrev_b32 v9, 5, v0"); e("v_lshl_add_u32 v8, v9, 3, v8")
    e(f"s_lshr_b32 {sT}, {sW}, 1"); e(f"s_lshl_b32 {sT}, {sT}, 6"); e(f"s_lshl_b32 {sU}, {sN2}, 7"); e(f"s_add_u32 {sT}, {sT}, {sU}")
    e(f"v_add_u32 v3, {sT}, v8")
    for g in range(4): e(f"buffer_load_dwordx2 {vr(RX + 2*g, 2)}, v3, {SRD_X}, 0 offen offset:{16*g}", tag="rx")
    for kl in range(36):
        e.wait(vm=f"v{kl}")
        lb, lo, reg = w2_slot(kl)
        for u in range(2):
            c, r = w2reg(kl, u)
            for m in range(2):
                e(f"ds_read_b64_tr_b16 {c}[{r+2*m}:{r+2*m+1}], v{tb[2*reg+u]} offset:{lo + 1024*m}", tag=f"t{kl}")
        if kl >= 1 and kl - 1 + W2_SLOTS < 36:
            e.wait(lg=f"t{kl-1}")
            for g in w2_dma_groups(kl - 1 + W2_SLOTS): emit_group(e, g)
    stamp(e, o, 7)
    A2 = 128
    D = o.a2_depth
    assert A2 + 8 * D <= 255
    e("v_lshlrev_b32 v8, 4, v0"); e(f"s_and_b32 {sT}, {sW}, 1"); e(f"s_lshl_b32 {sT}, {sT}, 10")
    e(f"v_add_u32 v8, {sT}, v8"); e("v_xor_b32 v9, 0x400, v8")
    e(f"s_mul_i32 {sA2}, {sT2}, 144"); e(f"s_mul_i32 {sT}, {sW}, 36"); e(f"s_add_u32 {sA2}, {sA2}, {sT}"); e(f"s_lshl_b32 {sA2}, {sA2}, 11")
    e(f"s_lshr_b32 {sT}, {sT2}, 1"); e(f"s_lshl_b32 {sT}, {sT}, 2"); e(f"s_add_u32 {sT}, {sT}, {sW}"); e(f"s_lshl_b32 {sT}, {sT}, 2"); e(f"v_mov_b32 v2, {sT}")
    def a2_load(kl):
        if kl % 2 == 0 and kl: e(f"s_add_u32 {sA2}, {sA2}, 4096")
        for u in range(2):
            e(f"buffer_load_dwordx4 {vr(A2 + 8*(kl % D) + 4*u, 4)}, v{8+u}, {SRD_WS}, {sA2} offen offset:{2048*(kl & 1)} {o.ld_pol}", tag=f"a{kl}")
    if not o.split: poll(e, o, "0x0101", "L_pollF")
    stamp(e, o, 8)
    issued = 0
    def issue_upto(n):
        nonlocal issued
        while issued < min(n, 36):
            if issued == 20 and not o.split:
                return False
            a2_load(issued); issued += 1
        return True
    issue_upto(D)
    e.wait(lg=0)
    C2 = 16
    polled = o.split
    for kl in range(36):
        if not polled and issued == 20 and kl + D > 20:
            poll(e, o, "0x01010101", "L_pollB"); polled = True
            stamp(e, o, 9)
            o2 = min(kl + D, 36)
            while issued < o2: a2_load(issued); issued += 1
        e.wait(vm=f"a{kl}")
        for u in range(2):
            for p in range(2):
                c, r = w2reg(kl, u)
                d = vr(C2 + 16 * (2*u + p), 16)
                e(f"v_mfma_f32_32x32x16_bf16 {d}, {c}[{r}:{r+3}], {vr(A2 + 8*(kl % D) + 4*p, 4)}, {'0' if kl == 0 else d}")
        if polled:
            while issued < min(kl + 1 + D, 36): a2_load(issued); issued += 1
        else: issue_upto(kl + 1 + D)
    stamp(e, o, 10)
    e("v_lshlrev_b32 v8, 4, v0"); e(f"v_add_u32 v9, {sRL}, v8")
    for j in range(1, 4):
        for q in range(4): e(f"ds_write_b128 v9, {vr(C2 + 16*j + 4*q, 4)} offset:{j*4096 + q*1024}", tag="red")
    for j in range(1, 4):
        e(f"s_xor_b32 {sT}, {sW}, {j}"); e(f"s_mul_i32 {sT}, {sT}, {SLOT}"); e(f"v_add_u32 v{10+j}, {sT}, v8")
    e.wait(lg=0); e("s_barrier")
    for j in range(1, 4):
        for q in range(4): e(f"ds_read_b128 {vr(C2 + 16*j + 4*q, 4)}, v{10+j} offset:{j*4096 + q*1024}", tag=f"rr{j}")
    e.wait(vm="rx")
    for g in range(4):
        for h in range(2):
            e(f"v_lshlrev_b32 v{128+4*g+2*h}, 16, v{RX+2*g+h}"); e(f"v_and_b32 v{129+4*g+2*h}, {sMSK}, v{RX+2*g+h}")
    for j in range(0, 16, 2): e(f"v_pk_add_f32 {vr(C2+j, 2)}, {vr(C2+j, 2)}, {vr(128+j, 2)}")
    for jj in range(1, 4):
        e.wait(lg=f"rr{jj}")
        for j in range(0, 16, 2): e(f"v_pk_add_f32 {vr(C2+j, 2)}, {vr(C2+j, 2)}, {vr(C2+16*jj+j, 2)}")
    for j in range(8): e(f"v_cvt_pk_bf16_f32 v{C2+j}, v{C2+2*j}, v{C2+2*j+1}")
    for g in range(4): e(f"buffer_store_dwordx2 {vr(C2 + 2*g, 2)}, v3, {SRD_OUT}, 0 offen offset:{16*g}", tag="out")
    e.label(f"L_fin_{entry}")
    e.hist = []
    if o.ts:
        stamp(e, o, 11)
        e(f"s_memrealtime s[{sTS+2}:{sTS+3}]"); e.wait(lg=0); e(f"v_writelane_b32 v255, s{sTS+2}, 14")
        e(f"s_lshl_b32 {sT}, s2, 2"); e(f"s_add_u32 {sT}, {sT}, {sW}"); e(f"s_lshl_b32 {sT}, {sT}, 6")
        e(f"s_add_u32 {sT}, {sT}, {(16 << 20) + (65536 if entry == 'k2' else 0)}")
        e("s_mov_b32 s22, 0x2000000"); e("v_lshlrev_b32 v1, 2, v0"); e("s_mov_b64 exec, 0xffff")
        e(f"buffer_store_dword v255, v1, {SRD_WS}, {sT} offen")
    e.wait(vm=0)

KD = """.amdhsa_kernel {name}
  .amdhsa_next_free_vgpr 512
  .amdhsa_next_free_sgpr 102
  .amdhsa_accum_offset 256
  .amdhsa_group_segment_fixed_size 0
  .amdhsa_kernarg_size 80
  .amdhsa_user_sgpr_count 2
  .amdhsa_user_sgpr_kernarg_segment_ptr 1
  .amdhsa_system_sgpr_workgroup_id_x 1
.end_amdhsa_kernel
"""
def kernel_head(name): return f".globl {name}\n.p2align 8\n.type {name},@function\n{name}:\n"

def phase1_both(e, o, w2_pref):
    e(f"s_cmp_ge_u32 {sJJ}, 2"); e("s_cbranch_scc1 L_typeB")
    ef = e.fork(); prologue(ef, o, "F"); main_loop(ef, o, "F", w2_pref); epilogue_F(ef, o); publish(ef, o); ef("s_branch L_join")
    eb = e.fork(); prologue(eb, o, "B"); main_loop(eb, o, "B", w2_pref); epilogue_B(eb, o); publish(eb, o)
    e.lines += ef.lines; e.label("L_typeB"); e.lines += eb.lines; e.label("L_join")
    e.hist = []; e.lg = []; e.vm = [("flag", set())]
    sys.stderr.write(f"F: {ef.nins} instrs {ef.stats}\nB: {eb.nins} instrs {eb.stats}\n")

def generate(o):
    head = open("parallel_sum__sliding_local_dilated__geglu_ffn__prompt.s.ref").read().split("; Override launch")[0]
    out = head
    if o.split:
        out += f"; @launch kernel=ph1_kernel grid=(256,1,1) block=(256,1,1) lds={LDS_BYTES}\n"
        out += f"; @launch kernel=ph2_kernel grid=(256,1,1) block=(256,1,1) lds={LDS_BYTES}\n"
    else:
        out += f"; @launch grid=(256,1,1) block=(256,1,1) lds={LDS_BYTES}\n"
    out += '.amdgcn_target "amdgcn-amd-amdhsa--gfx950"\n.text\n'
    if o.split:
        e = Emitter(); setup(e, o, "k1"); phase1_both(e, o, False)
        e(f"s_mov_b32 {sS}, 28")
        phase_end = Emitter()
        e.label("L_fin_k1")
        if o.ts:
            e(f"s_memrealtime s[{sTS+2}:{sTS+3}]"); e.wait(lg=0); e(f"v_writelane_b32 v255, s{sTS+2}, 14")
            e(f"s_lshl_b32 {sT}, s2, 2"); e(f"s_add_u32 {sT}, {sT}, {sW}"); e(f"s_lshl_b32 {sT}, {sT}, 6"); e(f"s_add_u32 {sT}, {sT}, {16 << 20}")
            e("s_mov_b32 s22, 0x2000000"); e("v_lshlrev_b32 v1, 2, v0"); e("s_mov_b64 exec, 0xffff")
            e(f"buffer_store_dword v255, v1, {SRD_WS}, {sT} offen")
        e.label("L_end_k1"); e("s_endpgm")
        out += kernel_head("ph1_kernel") + e.text()
        e = Emitter(); setup(e, o, "k2"); phase2(e, o, 0, "k2"); e.label("L_end_k2"); e("s_endpgm")
        out += kernel_head("ph2_kernel") + e.text()
        out += '.section .rodata,"a"\n.p2align 6\n' + KD.format(name="ph1_kernel") + ".p2align 6\n" + KD.format(name="ph2_kernel")
    else:
        e = Emitter(); setup(e, o, "k"); phase1_both(e, o, True); phase2(e, o, W2_SLOTS, "k"); e.label("L_end_k"); e("s_endpgm")
        out += kernel_head(KN) + e.text()
        out += '.section .rodata,"a"\n.p2align 6\n' + KD.format(name=KN)
    return out

if __name__ == "__main__":
    o = Opt()
    path = sys.argv[1]
    for a in sys.argv[2:]:
        k, v = a.split("=")
        cur = getattr(o, k)
        setattr(o, k, (v == "1") if isinstance(cur, bool) else type(cur)(v.replace("+", " ")))
    open(path, "w").write(generate(o))
```

```python
import sys, math, struct
from emit import Emitter

KN = "parallel_sum__sliding_local_dilated__geglu_ffn__prompt_kernel"
def f32(x): return "0x%08x" % struct.unpack("<I", struct.pack("<f", x))[0]

SLOT = 20544
RING = 0
XST = 4 * SLOT
HALO = XST + 65536
LDS_BYTES = 163840
UPOFF_F = 10272
KX, HK, VX, HV = HALO, HALO + 4096, HALO + 6144, HALO + 10240

sW = "s3"
SRD_X, SRD_WA, SRD_WG, SRD_WU, SRD_WS, SRD_DN, SRD_WO, SRD_OUT, SRD_DBG = [f"s[{4*i}:{4*i+3}]" for i in range(1, 10)]
sI, sJJ, sCG, sXCD, sS = "s40", "s41", "s42", "s43", "s44"
sROT, sK0, sKC, sT0X = "s45", "s46", "s47", "s48"
sO0, sO1, sO2, sO3 = "s49", "s50", "s51", "s52"
sMSK, sONES = "s53", "s54"
sLW, sA2 = "s55", "s56"
sT, sU, sV = "s57", "s58", "s59"
sXL, sRL = "s60", "s61"
sDN, sWO = "s62", "s63"
sK2 = "s[84:85]"; sC2 = "s[86:87]"
sT2, sN2 = "s88", "s89"
sFLAG = "s90"; sCNT = "s91"
sTS = 92

vL = "v0"
vA, vB, vG0, vG1, vH, vHX, vHXb = "v1", "v2", "v3", "v4", "v5", "v6", "v7"
vD = ["v8", "v9", "v10", "v11", "v12"]
vR, vNMR = "v13", "v14"
vW2 = "v15"
ACC0 = 16
def acc(b, lo=0, hi=15): return f"v[{ACC0+16*b+lo}:{ACC0+16*b+hi}]"
def accr(b, r): return f"v{ACC0+16*b+r}"
XN = [192, 196]
TMP = 200
MSK = 208
EX = 228
NF = 12
AFR = 112
def vr(lo, n): return f"v[{lo}:{lo+n-1}]" if n > 1 else f"v{lo}"
def ar(lo, n): return f"a[{lo}:{lo+n-1}]" if n > 1 else f"a{lo}"

class Opt:
    split = False
    ts = False
    st_pol = "sc1"
    ld_pol = "sc1"
    flag = "atomic"
    code_lines = 512
    a2_depth = 14
    maxfill = 6
    bd = 3
    padmode = 0
    padus = 0

def stamp(e, o, k):
    if o.ts:
        assert not e.lg or True
        e.wait(lg=0)
        e(f"s_memtime s[{sTS+2*0}:{sTS+2*0+1}]"); e.wait(lg=0)
        e(f"v_writelane_b32 v255, s{sTS}, {k}")

def srd(e, reg, plo, nbytes):
    b = int(reg[2:].split(":")[0])
    e(f"s_mov_b32 s{b}, s{plo}"); e(f"s_mov_b32 s{b+1}, s{plo+1}")
    e(f"s_mov_b32 s{b+2}, {nbytes}"); e(f"s_mov_b32 s{b+3}, 0x20000")

def setup(e, o, entry):
    e(f"s_cmp_ge_u32 s2, 256"); e("s_cbranch_scc1 L_end_" + entry)
    e("s_load_dwordx16 s[64:79], s[0:1], 0"); e("s_load_dwordx4 s[80:83], s[0:1], 64")
    if o.padus: e("s_memrealtime s[98:99]")
    if o.ts:
        e("v_mov_b32 v255, 0")
        e(f"s_memrealtime s[{sTS+2}:{sTS+3}]")
        e(f"s_memtime s[{sTS}:{sTS+1}]")
    e("v_lshrrev_b32 v1, 6, v0"); e("v_and_b32 v0, 63, v0")
    e(f"v_readfirstlane_b32 {sW}, v1")
    e(f"s_and_b32 {sXCD}, s2, 7"); e(f"s_lshr_b32 {sS}, s2, 3")
    e(f"s_lshr_b32 {sCG}, {sXCD}, 1"); e(f"s_lshr_b32 {sJJ}, {sS}, 3")
    e(f"s_and_b32 {sT}, {sXCD}, 1"); e(f"s_lshl_b32 {sT}, {sT}, 3"); e(f"s_and_b32 {sI}, {sS}, 7"); e(f"s_add_u32 {sI}, {sI}, {sT}")
    e(f"s_getpc_b64 s[{sTS+4}:{sTS+5}]")
    e(f"s_lshl_b32 {sT}, {sS}, 2"); e(f"s_add_u32 {sT}, {sT}, {sW}"); e(f"s_lshl_b32 {sT}, {sT}, 2")
    e(f"v_and_b32 v1, 3, v0"); e(f"v_add_u32 v1, {sT}, v1"); e(f"v_min_u32 v1, {o.code_lines-1}, v1"); e("v_lshlrev_b32 v1, 7, v1")
    e(f"global_load_dword v254, v1, s[{sTS+4}:{sTS+5}]", tag="pf")
    e(f"s_mov_b32 {sMSK}, 0xffff0000"); e(f"s_mov_b32 {sONES}, 0x3f803f80")
    e(f"s_lshl_b32 {sXL}, {sW}, 14"); e(f"s_add_u32 {sXL}, {sXL}, {XST}")
    e(f"s_mul_i32 {sRL}, {sW}, {SLOT}")
    e(f"s_and_b32 {sT2}, {sS}, 3"); e(f"s_lshl_b32 {sT}, {sXCD}, 2"); e(f"s_add_u32 {sT2}, {sT2}, {sT}")
    e(f"s_lshr_b32 {sN2}, {sS}, 2")
    e(f"s_mul_i32 {sDN}, {sW}, {448*896}"); e(f"s_mul_i32 {sWO}, {sW}, {112*896}")
    e("v_lshrrev_b32 v1, 3, v0"); e(f"v_mul_u32_u24 v1, 896, v1")
    e("v_and_b32 v2, 7, v0"); e("v_lshrrev_b32 v3, 2, v0"); e("v_and_b32 v3, 4, v3"); e("v_xor_b32 v2, v2, v3")
    e(f"v_lshl_add_u32 {vW2}, v2, 4, v1")
    e(f"s_lshl_b32 {sT}, {sN2}, 7"); e(f"s_cmp_ge_u32 {sS}, 28"); e(f"s_cselect_b32 {sT}, 0x80000000, {sT}")
    e(f"v_add_u32 {vW2}, {sT}, {vW2}")
    e.wait(lg=0)
    if o.ts: e(f"v_writelane_b32 v255, s{sTS}, 0"); e(f"v_writelane_b32 v255, s{sTS+2}, 15")
    srd(e, SRD_X, 64, 1835008); srd(e, SRD_WS, 82, 32*144*2048); srd(e, SRD_DN, 76, 1605632); srd(e, SRD_WO, 68, 401408)
    srd(e, SRD_OUT, 78, 1835008); srd(e, SRD_DBG, 80, 256)

def x_dma(e, n):
    for q in range(4):
        e(f"s_add_u32 {sT}, {sXL}, {(n % 4) * 4096 + q * 1024}"); e(f"s_mov_b32 m0, {sT}")
        if q: e(f"s_add_u32 {sU}, {sO0}, {q * 14336}")
        e(f"buffer_load_dwordx4 {vD[q & 1]}, {SRD_X}, {sU if q else sO0} offen lds", tag=f"x{n}")
    e(f"s_add_u32 {sROT}, {sROT}, 128"); e(f"s_cmp_eq_u32 {sROT}, 896"); e(f"s_cselect_b32 {sROT}, 0, {sROT}")
    e(f"s_add_u32 {sO0}, {sT0X}, {sROT}")

def w_dma_groups(typ, it):
    g = []
    slot = RING + (it % 4) * SLOT
    adv = [f"s_add_u32 {sK0}, {sK0}, 32", f"s_cmp_eq_u32 {sK0}, 448", f"s_cselect_b32 {sK0}, 0, {sK0}"]
    if typ == "F":
        for q in range(5):
            pre = [f"s_mul_i32 {sO1}, {sK0}, 3584"] if q == 0 else []
            g.append(pre + [f"s_add_u32 {sT}, {sLW}, {slot + q * 1024}", f"s_mov_b32 m0, {sT}"] + (adv if q == 0 else []) +
                     [(f"buffer_load_dwordx4 {vD[q]}, {SRD_WA}, {sO1} offen lds", f"w{it}")])
    else:
        for arr in range(5):
            pre = []
            if arr == 0: pre = [f"s_mul_i32 {sO1}, {sK0}, 2688", f"s_mul_i32 {sO2}, {sK0}, 3584"]
            if arr in (1, 2): pre = [f"s_add_u32 {sO1}, {sO1}, 896"]
            dst = slot + arr * 4096 + (32 if arr == 4 else 0)
            ld = (f"buffer_load_dwordx4 {vD[0]}, {SRD_WA}, {sO1} offen lds" if arr < 3 else
                  f"buffer_load_dwordx4 {vD[1]}, {SRD_WG if arr == 3 else SRD_WU}, {sO2} offen lds")
            g.append(pre + [f"s_add_u32 {sT}, {sLW}, {dst}", f"s_mov_b32 m0, {sT}"] + (adv if arr == 0 else []) + [(ld, f"w{it}")])
    return g

def w2_rows(kl):
    if kl < 20: return SRD_DN, sDN, 128 + 16 * kl
    b, r = divmod(kl - 20, 8)
    if r < 4: return SRD_DN, sDN, 64 * b + 16 * r
    hd, s = divmod(r - 4, 2)
    return SRD_WO, sWO, 28 * (2 * b + hd) + 16 * s

W2_SLOTS = 18
def w2_slot(kl):
    s = kl % W2_SLOTS
    return (sXL, s * 2048, 0) if s < 8 else (sRL, (s - 8) * 2048, 1)

def w2_dma_groups(kl):
    srd_, base, row = w2_rows(kl)
    lb, lo, _ = w2_slot(kl)
    g = []
    for h in range(2):
        g.append([f"s_add_u32 {sT}, {lb}, {lo + h * 1024}", f"s_mov_b32 m0, {sT}", f"s_add_u32 {sU}, {base}, {(row + 8 * h) * 896}",
                  (f"buffer_load_dwordx4 {vW2}, {srd_}, {sU} offen lds", f"v{kl}")])
    return g

def emit_group(e, g):
    for x in g:
        if isinstance(x, tuple): e(x[0], tag=x[1])
        else: e(x)

def prologue(e, o, typ):
    B = typ == "B"
    if B:
        srd(e, SRD_WA, 66, 1204224); srd(e, SRD_WG, 72, 1605632); srd(e, SRD_WU, 74, 1605632)
    else:
        e(f"s_cmp_ge_u32 {sW}, 2"); e("s_cselect_b32 s8, s74, s72"); e("s_cselect_b32 s9, s75, s73")
        e("s_mov_b32 s10, 1605632"); e("s_mov_b32 s11, 0x20000")
    e(f"s_lshl_b32 {sT}, {sJJ}, 1"); e(f"s_add_u32 {sT}, {sT}, {sI}")
    for _ in range(3):
        e(f"s_cmp_ge_u32 {sT}, 7"); e(f"s_cselect_b32 {sU}, 7, 0"); e(f"s_sub_u32 {sT}, {sT}, {sU}")
    e(f"s_lshl_b32 {sROT}, {sT}, 7"); e(f"s_lshl_b32 {sK0}, {sT}, 6"); e(f"s_lshl_b32 {sKC}, {sT}, 7")
    e(f"s_mul_i32 {sT0X}, {sI}, {128*896}"); e(f"s_add_u32 {sO0}, {sT0X}, {sROT}")
    e(f"s_lshr_b32 {sT}, {sW}, 1"); e(f"s_lshl_b32 {sT}, {sT}, 6"); e(f"s_and_b32 {sU}, {sW}, 1"); e(f"s_add_u32 {sT}, {sT}, {sU}")
    e("v_lshrrev_b32 v1, 3, v0"); e(f"v_lshl_add_u32 v1, v1, 1, {sT}"); e("v_mul_u32_u24 v1, 896, v1")
    e("v_and_b32 v2, 7, v0"); e("v_lshrrev_b32 v3, 4, v0"); e("v_xor_b32 v2, v2, v3")
    e(f"v_lshl_add_u32 {vD[0]}, v2, 4, v1"); e(f"v_xor_b32 {vD[1]}, 64, {vD[0]}")
    for n in range(4): x_dma(e, n)
    if B:
        for q in range(4):
            t = EX
            e(f"v_add_u32 v{t}, {64*q}, v0")
            e(f"v_mul_u32_u24 v{t+1}, 1150, v{t}"); e(f"v_lshrrev_b32 v{t+1}, 16, v{t+1}")
            e(f"v_mul_u32_u24 v{t+2}, 57, v{t+1}"); e(f"v_sub_u32 v{t+2}, v{t}, v{t+2}")
            e(f"s_lshl_b32 {sT}, {sW}, 2"); e(f"v_add_u32 v{t+1}, {sT}, v{t+1}")
            e(f"v_and_b32 v{t+3}, 7, v{t+1}"); e(f"v_lshlrev_b32 v{t+3}, 1, v{t+3}")
            e(f"v_lshrrev_b32 v{t+1}, 3, v{t+1}"); e(f"v_sub_u32 v{t+3}, v{t+3}, v{t+1}"); e(f"v_add_u32 v{t+3}, -15, v{t+3}")
            e(f"v_mul_i32_i24 v{t+3}, 896, v{t+3}"); e(f"v_lshl_add_u32 v{t+3}, v{t+2}, 4, v{t+3}")
            e(f"v_add_u32 v{t+3}, {sT0X}, v{t+3}")
            e(f"v_cmp_gt_i32 vcc, 0, v{t+3}"); e(f"v_mov_b32 v{t+4}, 0x80000000"); e(f"v_cndmask_b32 v{t+3}, v{t+3}, v{t+4}, vcc")
            e(f"v_cmp_eq_u32 vcc, 56, v{t+2}"); e(f"v_cndmask_b32 v{t+3}, v{t+3}, v{t+4}, vcc")
            e(f"s_mul_i32 {sT}, {sW}, {4*912}"); e(f"s_add_u32 {sT}, {sT}, {HALO + q*1024}"); e(f"s_mov_b32 m0, {sT}")
            if q == 3: e("s_mov_b32 exec_hi, 15")
            e(f"buffer_load_dwordx4 v{t+3}, {SRD_X}, 0 offen lds", tag="halo")
            if q == 3: e("s_mov_b32 exec_hi, -1")
    XR = [EX + 8 + k for k in range(4)]
    e("v_and_b32 v1, 31, v0"); e("v_lshrrev_b32 v2, 5, v0"); e("v_bfe_u32 v3, v0, 1, 3"); e("v_xor_b32 v2, v2, v3")
    e("v_lshlrev_b32 v1, 7, v1"); e(f"v_lshl_add_u32 v1, v2, 4, v1"); e(f"v_add_u32 v{XR[0]}, {sXL}, v1")
    for k in range(1, 4): e(f"v_xor_b32 v{XR[k]}, {32*k}, v{XR[0]}")
    WD = [EX + 12 + k for k in range(5)]
    if B:
        e(f"s_lshl_b32 {sT}, {sW}, 3"); e("v_lshrrev_b32 v1, 3, v0"); e(f"v_add_u32 v1, {sT}, v1")
        e("v_and_b32 v2, 7, v0"); e("v_lshrrev_b32 v3, 2, v0"); e("v_and_b32 v3, 4, v3"); e("v_xor_b32 v2, v2, v3")
        e(f"s_lshl_b32 {sT}, {sCG}, 1"); e(f"s_add_u32 {sT}, {sT}, {sJJ}"); e(f"s_sub_u32 {sT}, {sT}, 2"); e(f"s_mul_i32 {sT}, {sT}, 112")
        e("v_mul_u32_u24 v3, 2688, v1"); e(f"v_lshl_add_u32 v3, v2, 4, v3"); e(f"v_add_u32 v3, {sT}, v3")
        e("v_cmp_eq_u32 vcc, 7, v2"); e("v_mov_b32 v4, 0x80000000"); e(f"v_cndmask_b32 v{WD[0]}, v3, v4, vcc")
        e(f"s_mul_i32 {sT}, {sCG}, 896"); e(f"s_sub_u32 {sU}, {sJJ}, 2"); e(f"s_lshl_b32 {sU}, {sU}, 7"); e(f"s_add_u32 {sT}, {sT}, {sU}")
        e("v_mul_u32_u24 v3, 3584, v1"); e(f"v_lshl_add_u32 v3, v2, 4, v3"); e(f"v_add_u32 v{WD[1]}, {sT}, v3")
        e(f"s_lshl_b32 {sLW}, {sW}, 10")
    else:
        e(f"s_and_b32 {sU}, {sW}, 1"); e(f"s_mul_i32 {sV}, {sU}, 320")
        e(f"s_mul_i32 {sT}, {sCG}, 896"); e(f"s_mul_i32 {sO1}, {sJJ}, 320"); e(f"s_add_u32 {sT}, {sT}, {sO1}"); e(f"s_add_u32 {sT}, {sT}, 256")
        for q in range(5):
            e(f"v_add_u32 v1, {sV}, v0")
            if q: e(f"v_add_u32 v1, {64*q}, v1")
            e("v_mul_u32_u24 v2, 3277, v1"); e("v_lshrrev_b32 v2, 16, v2")
            e("v_mul_u32_u24 v3, 20, v2"); e("v_sub_u32 v3, v1, v3")
            e("v_mul_u32_u24 v2, 3584, v2"); e(f"v_lshl_add_u32 v2, v3, 4, v2"); e(f"v_add_u32 v{WD[q]}, {sT}, v2")
        e(f"s_mul_i32 {sLW}, {sU}, 5120"); e(f"s_lshr_b32 {sU}, {sW}, 1"); e(f"s_mul_i32 {sU}, {sU}, {UPOFF_F}"); e(f"s_add_u32 {sLW}, {sLW}, {sU}")
    e("v_lshrrev_b32 v8, 5, v0") if False else None
    t = EX + 17
    e(f"v_lshrrev_b32 v{t}, 5, v0"); e(f"v_bfe_u32 v{t+1}, v0, 2, 2"); e(f"v_lshl_add_u32 v{t}, v{t}, 3, v{t+1}")
    e(f"v_bfe_u32 v{t+2}, v0, 4, 1")
    e(f"v_and_b32 v{t+3}, 3, v0"); e(f"v_lshlrev_b32 v{t+3}, 3, v{t+3}")
    if B:
        e(f"v_bfe_u32 v{t+4}, v0, 3, 1"); e(f"v_lshlrev_b32 v{t+4}, 6, v{t+4}")
        e(f"v_lshlrev_b32 v{t}, 7, v{t}")
        e(f"v_lshl_add_u32 v{t+5}, v{t+2}, 5, v{t+3}")
        e(f"v_xor_b32 {vA}, v{t+5}, v{t+4}"); e(f"v_add_u32 {vA}, {vA}, v{t}")
        e(f"v_add_u32 v{t+5}, 56, v{t+5}"); e(f"v_xor_b32 {vB}, v{t+5}, v{t+4}"); e(f"v_add_u32 {vB}, {vB}, v{t}")
        e(f"v_mul_u32_u24 v{t+5}, 4128, v{t+2}"); e(f"v_add3_u32 v{t+5}, v{t+5}, v{t+3}, v{t}")
        e(f"v_add_u32 {vG0}, v{t+5}, v{t+4}"); e(f"v_xor_b32 v{t+4}, 64, v{t+4}"); e(f"v_add_u32 {vG1}, v{t+5}, v{t+4}")
        e(f"s_cmp_ge_u32 {sW}, 2"); e(f"s_cselect_b64 vcc, -1, 0"); e(f"v_cndmask_b32 {vH}, {vA}, {vB}, vcc")
        e(f"s_and_b32 {sT}, {sW}, 1"); e(f"s_add_u32 {sT}, {sT}, 1"); e(f"s_lshl_b32 {sT}, {sT}, 12"); e(f"v_add_u32 {vH}, {sT}, {vH}")
        e(f"v_and_b32 v{t}, 15, v0"); e(f"v_mul_u32_u24 v{t}, 912, v{t}"); e(f"v_lshrrev_b32 v{t+1}, 5, v0")
        e(f"v_lshl_add_u32 v{t}, v{t+1}, 4, v{t}"); e(f"v_add_u32 {vHXb}, {HALO}, v{t}")
        e(f"v_and_b32 v{t}, 31, v0"); e(f"v_lshrrev_b32 v{t+1}, 5, v0"); e(f"v_lshlrev_b32 v{t+1}, 2, v{t+1}")
        e(f"v_sub_u32 v{t}, v{t}, v{t+1}")
        e(f"v_mov_b32 v{t+2}, {f32(-1e30)}")
        for r in range(16):
            i0 = 8 * (r >> 2) + (r & 3)
            e(f"v_subrev_u32 v{t+1}, {i0}, v{t}"); e(f"v_cmp_gt_u32 vcc, 8, v{t+1}"); e(f"v_cndmask_b32 v{MSK+r}, v{t+2}, 0, vcc")
        e(f"s_cmp_eq_u32 {sI}, 0"); e(f"s_cselect_b32 {sT}, 2, 0"); e(f"s_cmp_lt_u32 {sW}, {sT}"); e(f"s_cselect_b32 {sT}, 100, 1")
        e(f"v_add_u32 v{t}, {sT}, v{t}")
        for r in range(4):
            e(f"v_cmp_ge_i32 vcc, {r}, v{t}"); e(f"v_cndmask_b32 v{MSK+16+r}, v{t+2}, 0, vcc")
    else:
        e(f"v_mul_u32_u24 v{t}, 320, v{t}"); e(f"v_mul_u32_u24 v{t+2}, {UPOFF_F}, v{t+2}"); e(f"v_add3_u32 {vA}, v{t}, v{t+2}, v{t+3}")
    S = [TMP + k for k in range(4)]
    for k in range(4): e(f"v_mov_b32 v{S[k]}, 0")
    def x_consume(n):
        e.wait(vm=f"x{n}")
        for kk in range(4):
            e(f"ds_read_b128 {vr(ACC0 + 4*kk + 16*(n & 1), 4)}, v{XR[kk]} offset:{(n % 4) * 4096}", tag=f"xs{n}")
        for kk in range(4):
            e(f"ds_read_b128 {ar(16*n + 4*kk, 4)}, v{XR[kk]} offset:{(n % 4) * 4096}", tag=f"xa{n}")
    def x_stats(n):
        e.wait(lg=f"xs{n}")
        for d in range(16):
            r = ACC0 + 16 * (n & 1) + d
            e(f"v_dot2_f32_bf16 v{S[d & 1]}, v{r}, v{r}, v{S[d & 1]}")
            e(f"v_dot2_f32_bf16 v{S[2 + (d & 1)]}, v{r}, {sONES}, v{S[2 + (d & 1)]}")
    def halo_norm():
        h = ACC0 + 32
        t = ACC0 + 48
        e.wait(vm="halo")
        e(f"v_lshrrev_b32 v{t}, 4, v0"); e(f"s_lshl_b32 {sT}, {sW}, 2"); e(f"v_add_u32 v{t}, {sT}, v{t}"); e(f"v_mul_u32_u24 v{t}, 912, v{t}")
        e(f"v_and_b32 v{t+1}, 15, v0"); e(f"v_mul_u32_u24 v{t+1}, 56, v{t+1}"); e(f"v_add_u32 v{t}, v{t}, v{t+1}"); e(f"v_add_u32 v{t}, {HALO}, v{t}")
        for m in range(7): e(f"ds_read_b64 {vr(h + 2*m, 2)}, v{t} offset:{8*m}", tag="hr")
        e(f"v_mov_b32 v{t+1}, 0"); e(f"v_mov_b32 v{t+2}, 0")
        e.wait(lg="hr")
        for d in range(14):
            e(f"v_dot2_f32_bf16 v{t+1}, v{h+d}, v{h+d}, v{t+1}"); e(f"v_dot2_f32_bf16 v{t+2}, v{h+d}, {sONES}, v{t+2}")
        for sh in (8, 4, 2, 1):
            e(f"v_add_f32_dpp v{t+1}, v{t+1}, v{t+1} row_ror:{sh} row_mask:0xf bank_mask:0xf")
            e(f"v_add_f32_dpp v{t+2}, v{t+2}, v{t+2} row_ror:{sh} row_mask:0xf bank_mask:0xf")
        finish_stats(e, t + 1, t + 2, t + 3, t + 4, t + 5)
        for d in range(14):
            e(f"v_lshlrev_b32 v{t+6}, 16, v{h+d}"); e(f"v_and_b32 v{t+7}, {sMSK}, v{h+d}")
            e(f"v_fma_f32 v{t+6}, v{t+6}, v{t+3}, v{t+4}"); e(f"v_fma_f32 v{t+7}, v{t+7}, v{t+3}, v{t+4}")
            e(f"v_cvt_pk_bf16_f32 v{h+d}, v{t+6}, v{t+7}")
        for m in range(7): e(f"ds_write_b64 v{t}, {vr(h + 2*m, 2)} offset:{8*m}", tag="hw")
    for n in range(3):
        x_consume(n); e.wait(lg=f"xa{n}"); x_dma(e, n + 4); x_stats(n)
    for k in range(5 if not B else 2): e(f"v_mov_b32 {vD[k]}, v{WD[k]}")
    for it in range(4):
        for g in w_dma_groups(typ, it): emit_group(e, g)
    stamp(e, o, 1)
    if B: halo_norm()
    for n in range(3, 7):
        x_consume(n); x_stats(n)
    e(f"v_add_f32 v{S[0]}, v{S[0]}, v{S[1]}"); e(f"v_add_f32 v{S[2]}, v{S[2]}, v{S[3]}")
    e(f"v_mov_b32 v{S[1]}, v{S[0]}"); e(f"v_mov_b32 v{S[3]}, v{S[2]}")
    e(f"v_permlane32_swap_b32 v{S[0]}, v{S[1]}"); e(f"v_permlane32_swap_b32 v{S[2]}, v{S[3]}")
    e(f"v_add_f32 v{S[0]}, v{S[0]}, v{S[1]}"); e(f"v_add_f32 v{S[2]}, v{S[2]}, v{S[3]}")
    finish_stats(e, S[0], S[2], int(vR[1:]), int(vNMR[1:]), S[1])
    e.wait(lg=0)
    stamp(e, o, 2)

def finish_stats(e, sq, sm, r, nmr, t):
    e(f"v_mul_f32 v{sm}, {f32(1/448)}, v{sm}"); e(f"v_mul_f32 v{sq}, {f32(1/448)}, v{sq}")
    e(f"v_fma_f32 v{sq}, -v{sm}, v{sm}, v{sq}"); e(f"v_max_f32 v{sq}, 0, v{sq}"); e(f"v_add_f32 v{sq}, {f32(1e-5)}, v{sq}")
    e(f"v_rsq_f32 v{r}, v{sq}"); e(f"v_mul_f32 v{nmr}, -v{sm}, v{r}") if False else None
    e(f"v_mul_f32 v{t}, v{sm}, v{r}"); e(f"v_sub_f32 v{nmr}, 0, v{t}")

def xn_ops(ks):
    b = XN[ks & 1]; t = TMP
    ops = [f"v_accvgpr_read_b32 v{t+4+j}, a{4*ks+j}" for j in range(4)]
    ops += [f"v_lshlrev_b32 v{t+j}, 16, v{t+4+j}" for j in range(4)]
    ops += [f"v_and_b32 v{t+4+j}, {sMSK}, v{t+4+j}" for j in range(4)]
    ops += [f"v_fma_f32 v{t+j}, v{t+j}, {vR}, {vNMR}" for j in range(8)]
    ops += [f"v_cvt_pk_bf16_f32 v{b+j}, v{t+j}, v{t+4+j}" for j in range(4)]
    return ops

def main_loop(e, o, typ, w2_pref):
    B = typ == "B"
    frags = []; mf = []
    for it in range(14):
        so = (it % 2) * SLOT
        for kk in range(2):
            ks = 2 * it + kk
            xn = vr(XN[ks & 1], 4)
            def add(reads):
                frags.append((it, reads)); return len(frags) - 1
            def tr(base, off): return [("ds_read_b64_tr_b16", base, off(m), 2 * m, 2) for m in range(2)]
            if B:
                for b in range(10):
                    if b < 6: f = add(tr(vA if b < 3 else vB, lambda m: so + (b % 3) * 4096 + (16 * kk + 4 * m) * 128))
                    else: f = add(tr(vG0 if b < 8 else vG1, lambda m: so + 12288 + 32 * (b & 1) + (16 * kk + 4 * m) * 128))
                    mf.append((ks, b, f, None, b in (2, 5), xn))
                f = add(tr(vH, lambda m: so + (16 * kk + 4 * m) * 128))
                f2 = add([("ds_read_b128", vHX, 32 * kk, 0, 4)])
                mf.append((ks, 10, f, f2, True, None))
            else:
                for b in range(10):
                    f = add(tr(vA, lambda m: so + (16 * kk + 4 * m) * 320 + 32 * b))
                    mf.append((ks, b, f, None, False, xn))
    nb = 11 if B else 10
    last_use = {}
    for mi, (ks, b, f, f2, sw, xn) in enumerate(mf):
        last_use[f] = mi
        if f2 is not None: last_use[f2] = mi
    def freg(f): return AFR + 4 * (f % NF)
    for op in xn_ops(0): e(op)
    e.wait(vm="w0", lg=0); e("s_barrier")
    stamp(e, o, 3)
    opened = 0
    rq = [(f, r) for f, (it, reads) in enumerate(frags) for r in reads]
    rpos = 0
    dmaq = []
    bar_at = None
    base_slab = -1
    w2n = 0
    xq = []
    def open_bases(slab):
        bases = [vA, vB, vG0, vG1, vH] if B else [vA]
        if slab % 4 == 2:
            for v in bases: e(f"v_add_u32 {v}, {2*SLOT}, {v}")
        elif slab % 4 == 0 and slab:
            for v in bases: e(f"v_subrev_u32 {v}, {2*SLOT}, {v}")
        if B:
            e(f"v_add_u32 {vHX}, {sKC}, {vHXb}")
            e(f"s_add_u32 {sKC}, {sKC}, 64"); e(f"s_cmp_eq_u32 {sKC}, 896"); e(f"s_cselect_b32 {sKC}, 0, {sKC}")
    for mi, (ks, b, f, f2, sw, xn) in enumerate(mf):
        if b == 0 and ks + 1 < 28: xq = xn_ops(ks + 1)
        fill = 0
        if bar_at is not None and mi >= bar_at:
            nxt = opened + 1
            e.wait(vm=(f"w{nxt}" if nxt < 14 else None), lg=0); e("s_barrier"); fill += 2
            opened = nxt; bar_at = None
            if nxt + 3 < 14: dmaq += w_dma_groups(typ, nxt + 3)
            elif w2_pref:
                if nxt < 14:
                    for _ in range(2):
                        if w2n < 8: dmaq += w2_dma_groups(w2n); w2n += 1
        lim = 4 if mi > 0 else 14
        nr = 0
        while rpos < len(rq) and nr < lim and (fill < o.maxfill or mi == 0):
            ff, (mn, base, off, sub, n) = rq[rpos]
            slab = frags[ff][0]
            if slab > opened: break
            if ff >= NF and last_use[ff - NF] >= mi: break
            if len(e.lg) >= 14: break
            if slab != base_slab:
                open_bases(slab); base_slab = slab; fill += 1
            e(f"{mn} {ar(freg(ff) + sub, n)}, {base} offset:{off}", tag=f"f{ff}")
            rpos += 1; nr += 1; fill += 1
            if rpos == len(rq) or frags[rq[rpos][0]][0] != slab: bar_at = mi + o.bd
        remaining_gaps = max(1, nb - 1 - b)
        quota = -(-len(xq) // remaining_gaps) if b < nb - 1 else len(xq)
        k = 0
        while xq and (k < quota or fill < o.maxfill - 1):
            e(xq.pop(0)); k += 1; fill += 1
        if dmaq and fill < o.maxfill + 2:
            emit_group(e, dmaq.pop(0))
        e.wait(lg=f"f{f}")
        if f2 is not None: e.wait(lg=f"f{f2}")
        w = ar(freg(f), 4); x = xn if f2 is None else ar(freg(f2), 4)
        c = "0" if ks == 0 else acc(b)
        a_, b_ = (x, w) if sw else (w, x)
        e(f"v_mfma_f32_32x32x16_bf16 {acc(b)}, {a_}, {b_}, {c}")
    assert rpos == len(rq)
    if bar_at is not None:
        e.wait(lg=0); e("s_barrier")
    for g in dmaq: emit_group(e, g)
    if w2_pref:
        while w2n < W2_SLOTS:
            for g in w2_dma_groups(w2n): emit_group(e, g)
            w2n += 1
    stamp(e, o, 4)

K1 = -2.0 * math.sqrt(2.0 / math.pi) * math.log2(math.e)
K2 = K1 * 0.044715

def gelu_block(e, o, b, off):
    t = TMP
    g = lambda p: acc(b, 2*p, 2*p+1); u = lambda p: acc(b, 8+2*p, 9+2*p); tt = lambda p: vr(t + 2*p, 2)
    for p in range(4): e(f"v_pk_mul_f32 {tt(p)}, {g(p)}, {g(p)}")
    for p in range(4): e(f"v_pk_fma_f32 {tt(p)}, {tt(p)}, {sK2}, {vr(EX, 2)}")
    for p in range(4): e(f"v_pk_mul_f32 {tt(p)}, {tt(p)}, {g(p)}")
    for p in range(4): e(f"v_pk_mul_f32 {u(p)}, {u(p)}, {g(p)}")
    for j in range(8): e(f"v_exp_f32 v{t+j}, v{t+j}")
    for p in range(4): e(f"v_pk_add_f32 {tt(p)}, {tt(p)}, 1.0 op_sel_hi:[1,0]")
    for j in range(8): e(f"v_rcp_f32 v{t+j}, v{t+j}")
    for p in range(4): e(f"v_pk_mul_f32 {u(p)}, {u(p)}, {tt(p)}")
    for p in range(4): e(f"v_cvt_pk_bf16_f32 {accr(b, p)}, {accr(b, 8+2*p)}, {accr(b, 9+2*p)}")
    a2_store(e, o, acc(b, 0, 3), off)

def a2_store(e, o, data, kl_rel):
    e(f"s_add_u32 {sT}, {sA2}, {kl_rel * 2048}")
    e(f"buffer_store_dwordx4 {data}, v{EX+2}, {SRD_WS}, {sT} offen {o.st_pol}", tag="st")

def epi_setup(e, typ):
    e(f"s_mov_b32 s84, {f32(K2)}"); e(f"s_mov_b32 s85, {f32(K2)}")
    e(f"v_mov_b32 v{EX}, {f32(K1)}"); e(f"v_mov_b32 v{EX+1}, {f32(K1)}")
    e(f"v_lshlrev_b32 v{EX+2}, 4, v0")
    e(f"s_lshr_b32 {sT}, {sW}, 1"); e(f"s_lshl_b32 {sA2}, {sI}, 1"); e(f"s_add_u32 {sA2}, {sA2}, {sT}"); e(f"s_mul_i32 {sA2}, {sA2}, 144")
    e(f"s_mul_i32 {sT}, {sCG}, 36"); e(f"s_add_u32 {sA2}, {sA2}, {sT}")
    if typ == "F": e(f"s_mul_i32 {sT}, {sJJ}, 10")
    else: e(f"s_lshl_b32 {sT}, {sJJ}, 3"); e(f"s_add_u32 {sT}, {sT}, 4")
    e(f"s_add_u32 {sA2}, {sA2}, {sT}"); e(f"s_lshl_b32 {sA2}, {sA2}, 1"); e(f"s_and_b32 {sT}, {sW}, 1"); e(f"s_add_u32 {sA2}, {sA2}, {sT}")
    e(f"s_lshl_b32 {sA2}, {sA2}, 10")

def epilogue_F(e, o):
    epi_setup(e, "F")
    for b in range(10): gelu_block(e, o, b, b)

def pack(e, b, r0, n, dst):
    for j in range(n): e(f"v_cvt_pk_bf16_f32 v{dst+j}, {accr(b, r0+2*j)}, {accr(b, r0+2*j+1)}")

def epilogue_B(e, o):
    epi_setup(e, "B")
    t = EX + 3
    e("s_mov_b32 exec_lo, 0")
    for hd in range(2):
        for r in range(12, 16): e(f"v_mov_b32 {accr(3*hd, r)}, 0")
    e("s_mov_b32 exec_lo, -1")
    for b in range(6): pack(e, b, 0, 8, ACC0 + 16 * b)
    e(f"v_and_b32 v{t}, 7, v0"); e(f"v_lshlrev_b32 v{t}, 6, v{t}"); e(f"v_lshrrev_b32 v{t+1}, 5, v0"); e(f"v_lshl_add_u32 v{t}, v{t+1}, 3, v{t}")
    e(f"s_lshl_b32 {sT}, {sW}, 10"); e(f"s_add_u32 {sT}, {sT}, {KX}"); e(f"v_add_u32 v{t+1}, {sT}, v{t}")
    e("s_mov_b32 exec_lo, 0xff000000"); e("s_mov_b32 exec_hi, 0xff000000")
    for hd in range(2):
        for s in range(2):
            for m in range(2):
                e(f"ds_write_b64 v{t+1}, {acc(3*hd+1, 4*s+2*m, 4*s+2*m+1)} offset:{hd*512 + 32*s + 16*m}", tag="ex")
    e("s_mov_b64 exec, -1")
    e(f"v_lshlrev_b32 v{t+2}, 3, v0"); e(f"s_lshl_b32 {sT}, {sW}, 10"); e(f"s_add_u32 {sT}, {sT}, {VX}"); e(f"v_add_u32 v{t+3}, {sT}, v{t+2}")
    for hd in range(2): e(f"ds_write_b64 v{t+3}, {acc(3*hd+2, 6, 7)} offset:{hd*512}", tag="ex")
    pack(e, 10, 8, 4, ACC0 + 160)
    e(f"s_lshr_b32 {sU}, {sW}, 1"); e(f"s_lshl_b32 {sU}, {sU}, 10")
    e(f"s_bitcmp1_b32 {sW}, 0"); e("s_cbranch_scc1 L_halo_v")
    ek = e.fork()
    ek(f"v_and_b32 v{t+4}, 31, v0"); ek(f"v_lshlrev_b32 v{t+4}, 1, v{t+4}"); ek(f"v_lshrrev_b32 v{t+5}, 5, v0"); ek(f"v_lshl_add_u32 v{t+4}, v{t+5}, 8, v{t+4}")
    ek(f"s_add_u32 {sU}, {sU}, {HK}"); ek(f"v_add_u32 v{t+4}, {sU}, v{t+4}")
    for j in range(4):
        row = 8 * (j >> 1) + 2 * (j & 1)
        ek(f"ds_write_b16 v{t+4}, {accr(10, j)} offset:{64*row}", tag="ex")
        ek(f"ds_write_b16_d16_hi v{t+4}, {accr(10, j)} offset:{64*(row+1)}", tag="ex")
    ek.wait(lg=0); ek("s_branch L_halo_done")
    ev = e.fork()
    ev(f"s_add_u32 {sU}, {sU}, {HV}"); ev(f"v_add_u32 v{t+4}, {sU}, v{t+2}")
    ev(f"ds_write_b64 v{t+4}, {acc(10, 2, 3)} offset:0", tag="ex")
    ev(f"ds_write_b64 v{t+4}, {acc(10, 0, 1)} offset:512", tag="ex")
    ev.wait(lg=0)
    e.lines += ek.lines; e.label("L_halo_v"); e.lines += ev.lines; e.label("L_halo_done")
    e.lg = []; e.hist = []
    e("s_barrier")
    e(f"s_and_b32 {sT}, {sW}, 1"); e(f"s_lshl_b32 {sU}, {sT}, 10"); e(f"s_lshl_b32 {sT}, {sT}, 9")
    e(f"s_sub_u32 {sV}, {HK + 512}, {sT}"); e(f"s_add_u32 {sO1}, {sU}, {KX}")
    e(f"s_add_u32 {sO2}, {sT}, {HV}"); e(f"s_add_u32 {sO3}, {sU}, {VX}")
    e(f"s_cmp_lt_u32 {sW}, 2"); e(f"s_cselect_b32 {sV}, {sV}, {sO1}"); e(f"s_cselect_b32 {sO2}, {sO2}, {sO3}"); e(f"s_cselect_b32 {sO1}, 2, 1"); e(f"s_lshl_b32 {sO1}, {sO1}, 9")
    e(f"v_add_u32 v{t}, {sV}, v{t}"); e(f"v_add_u32 v{t+1}, {sO1}, v{t}")
    e(f"v_add_u32 v{t+2}, {sO2}, v{t+2}"); e(f"v_add_u32 v{t+3}, {sO1}, v{t+2}")
    SD = [ACC0 + 160, ACC0 + 160]
    SP = [XN[0] - 0, None]
    for hd in range(2):
        for s in range(2):
            for m in range(2):
                e(f"ds_read_b64 {acc(3*hd, 8+4*s+2*m, 9+4*s+2*m)}, v{t+hd} offset:{32*s + 16*m}", tag=f"kp{hd}")
        e(f"ds_read_b64 {acc(3*hd+1, 10, 11)}, v{t+2+hd}", tag=f"kp{hd}")
        for r in (8, 9, 12, 13): e(f"v_mov_b32 {accr(3*hd+1, r)}, 0")
    c = 28 ** -0.5 * math.log2(math.e)
    e(f"s_mov_b32 s86, {f32(c)}"); e(f"s_mov_b32 s87, {f32(c)}")
    gel = [6, 7, 8, 9]
    for hd in range(2):
        q = lambda s: acc(3*hd, 4*s, 4*s+3); k = lambda s: acc(3*hd+1, 4*s, 4*s+3); v = lambda s: acc(3*hd+2, 4*s, 4*s+3)
        kp = lambda s: acc(3*hd, 8+4*s, 11+4*s)
        sd = vr(SD[hd], 16)
        gb = gel.pop(0); gelu_block(e, o, gb, gb - 6)
        gb2 = gel.pop(0); gelu_block(e, o, gb2, gb2 - 6)
        spb = ACC0 + 16 * gb
        e(f"v_mfma_f32_32x32x16_bf16 {sd}, {k(0)}, {q(0)}, {vr(MSK, 16)}")
        e(f"v_mfma_f32_32x32x16_bf16 {sd}, {k(1)}, {q(1)}, {sd}")
        e.wait(lg=f"kp{hd}")
        sp = vr(spb, 16)
        e(f"v_mfma_f32_32x32x16_bf16 {sp}, {kp(0)}, {q(0)}, {vr(MSK+4, 16)}")
        e(f"v_mfma_f32_32x32x16_bf16 {sp}, {kp(1)}, {q(1)}, {sp}")
        vals = [SD[hd] + r for r in range(16)] + [spb + 12 + r for r in range(4)]
        m0, m1 = TMP, TMP + 1
        e(f"v_max3_f32 v{m0}, v{vals[0]}, v{vals[1]}, v{vals[2]}"); e(f"v_max3_f32 v{m1}, v{vals[3]}, v{vals[4]}, v{vals[5]}")
        for j in range(6, 18, 4):
            e(f"v_max3_f32 v{m0}, v{m0}, v{vals[j]}, v{vals[j+1]}"); e(f"v_max3_f32 v{m1}, v{m1}, v{vals[j+2]}, v{vals[j+3]}")
        e(f"v_max3_f32 v{m0}, v{m0}, v{vals[18]}, v{vals[19]}"); e(f"v_max_f32 v{m0}, v{m0}, v{m1}")
        e(f"v_mov_b32 v{m1}, v{m0}"); e(f"v_permlane32_swap_b32 v{m0}, v{m1}"); e(f"v_max_f32 v{m0}, v{m0}, v{m1}")
        e(f"v_mul_f32 v{m0}, -1.0, v{m0}"); e(f"v_mul_f32 v{m0}, s86, v{m0}"); e(f"v_mov_b32 v{m1}, v{m0}")
        for j in range(0, 20, 2): e(f"v_pk_fma_f32 {vr(vals[j], 2)}, {vr(vals[j], 2)}, {sC2}, {vr(m0, 2)}")
        for j in range(20): e(f"v_exp_f32 v{vals[j]}, v{vals[j]}")
        s0 = TMP + 2
        e(f"v_pk_add_f32 {vr(s0, 2)}, {vr(vals[0], 2)}, {vr(vals[2], 2)}"); e(f"v_pk_add_f32 {vr(s0+2, 2)}, {vr(vals[4], 2)}, {vr(vals[6], 2)}")
        for j in range(8, 20, 4):
            e(f"v_pk_add_f32 {vr(s0, 2)}, {vr(s0, 2)}, {vr(vals[j], 2)}"); e(f"v_pk_add_f32 {vr(s0+2, 2)}, {vr(s0+2, 2)}, {vr(vals[j+2], 2)}")
        e(f"v_pk_add_f32 {vr(s0, 2)}, {vr(s0, 2)}, {vr(s0+2, 2)}"); e(f"v_add_f32 v{s0}, v{s0}, v{s0+1}")
        e(f"v_mov_b32 v{s0+1}, v{s0}"); e(f"v_permlane32_swap_b32 v{s0}, v{s0+1}"); e(f"v_add_f32 v{s0}, v{s0}, v{s0+1}")
        e(f"v_rcp_f32 v{s0}, v{s0}")
        for j in range(8): e(f"v_cvt_pk_bf16_f32 v{SD[hd]+j}, v{vals[2*j]}, v{vals[2*j+1]}")
        for j in range(2): e(f"v_cvt_pk_bf16_f32 {accr(3*hd+1, 14+j)}, v{vals[16+2*j]}, v{vals[17+2*j]}")
        e(f"v_mov_b32 v{s0+1}, v{s0}")
        od = vr(spb, 16)
        e(f"v_mfma_f32_32x32x16_bf16 {od}, {v(0)}, {vr(SD[hd], 4)}, 0")
        e(f"v_mfma_f32_32x32x16_bf16 {od}, {v(1)}, {vr(SD[hd]+4, 4)}, {od}")
        e(f"v_mfma_f32_32x32x16_bf16 {od}, {acc(3*hd+1, 8, 11)}, {acc(3*hd+1, 12, 15)}, {od}")
        for j in range(0, 16, 2): e(f"v_pk_mul_f32 {vr(spb+j, 2)}, {vr(spb+j, 2)}, {vr(s0, 2)}")
        e("s_mov_b32 exec_lo, 0")
        for r in range(12, 16): e(f"v_mov_b32 v{spb+r}, 0")
        e("s_mov_b32 exec_lo, -1")
        for j in range(8): e(f"v_cvt_pk_bf16_f32 {accr(3*hd, j)}, v{spb+2*j}, v{spb+2*j+1}")
        a2_store(e, o, acc(3*hd, 0, 3), 4 + 2*hd); a2_store(e, o, acc(3*hd, 4, 7), 5 + 2*hd)

def publish(e, o):
    stamp(e, o, 5)
    e.wait(vm=0, lg=0); e("s_barrier")
    stamp(e, o, 6)
    if o.split: return
    e(f"s_cmp_lg_u32 {sW}, 0"); e("s_cbranch_scc1 L_noflag_%d" % id(e))
    e(f"s_lshl_b32 {sT}, {sI}, 2"); e(f"s_add_u32 {sT}, {sT}, {sCG}"); e(f"s_lshl_b32 {sT}, {sT}, 2")
    e("s_mov_b64 exec, 1")
    if o.flag == "atomic":
        e(f"s_lshl_b32 {sU}, 1, {sJJ}")
        if o.padmode:
            e("s_lshl_b32 s97, s98, 16"); e("s_cmp_eq_u32 s2, 0"); e("s_cselect_b32 s97, s97, 0"); e(f"s_add_u32 {sU}, {sU}, s97")
        e(f"v_mov_b32 v1, {sU}"); e(f"v_mov_b32 v2, {sT}")
        e(f"buffer_atomic_add v1, v2, {SRD_DBG}, 0 offen sc1", tag="flag")
    else:
        e(f"s_add_u32 {sT}, {sT}, {sJJ}")
        e(f"v_mov_b32 v1, 1"); e(f"v_mov_b32 v2, {sT}")
        e(f"buffer_store_byte v1, v2, {SRD_DBG}, 0 offen sc1", tag="flag")
    e("s_mov_b64 exec, -1")
    e.label("L_noflag_%d" % id(e))

def poll(e, o, mask, name):
    e(f"s_mov_b32 {sCNT}, 0")
    e.label(name)
    e(f"buffer_load_dword v1, v2, {SRD_DBG}, 0 offen sc1", tag="poll")
    e.wait(vm=0)
    e(f"v_readfirstlane_b32 {sFLAG}, v1")
    e(f"s_add_u32 {sCNT}, {sCNT}, 1")
    e(f"s_and_b32 {sT}, {sFLAG}, {mask}")
    e(f"s_cmp_eq_u32 {sT}, {mask}"); e(f"s_cbranch_scc1 {name}_ok")
    e(f"s_cmp_lt_u32 {sCNT}, 0x200000"); e(f"s_cbranch_scc1 {name}")
    e.label(name + "_ok")

def w2reg(kl, u):
    r = 8 * kl + 4 * u
    return ("a", r) if r < 256 else ("v", 96 + r - 256)

def phase2(e, o, npref, entry):
    e(f"s_cmp_ge_u32 {sS}, 28"); e(f"s_cbranch_scc1 L_fin_{entry}")
    for kl in range(npref, W2_SLOTS):
        for g in w2_dma_groups(kl): emit_group(e, g)
    tb = [4, 5, 6, 7]
    e("v_lshrrev_b32 v8, 5, v0"); e("v_bfe_u32 v9, v0, 2, 2"); e("v_lshl_add_u32 v8, v8, 2, v9"); e("v_lshlrev_b32 v8, 7, v8")
    e("v_bfe_u32 v9, v0, 4, 1"); e("v_and_b32 v10, 3, v0"); e("v_lshlrev_b32 v10, 3, v10"); e("v_lshl_add_u32 v9, v9, 5, v10")
    e("v_bfe_u32 v10, v0, 3, 1"); e(f"s_lshr_b32 {sT}, {sW}, 1"); e(f"v_xor_b32 v10, {sT}, v10"); e("v_lshlrev_b32 v10, 6, v10")
    e("v_add3_u32 v8, v8, v9, v10")
    e(f"v_add_u32 v4, {sXL}, v8"); e(f"v_add_u32 v6, {sRL}, v8"); e("v_xor_b32 v8, 64, v8"); e(f"v_add_u32 v5, {sXL}, v8"); e(f"v_add_u32 v7, {sRL}, v8")
    RX = 88
    e("v_and_b32 v8, 31, v0"); e(f"s_and_b32 {sT}, {sW}, 1"); e(f"s_lshl_b32 {sU}, {sT2}, 6"); e(f"s_add_u32 {sT}, {sT}, {sU}")
    e(f"v_lshl_add_u32 v8, v8, 1, {sT}"); e("v_mul_u32_u24 v8, 896, v8"); e("v_lshrrev_b32 v9, 5, v0"); e("v_lshl_add_u32 v8, v9, 3, v8")
    e(f"s_lshr_b32 {sT}, {sW}, 1"); e(f"s_lshl_b32 {sT}, {sT}, 6"); e(f"s_lshl_b32 {sU}, {sN2}, 7"); e(f"s_add_u32 {sT}, {sT}, {sU}")
    e(f"v_add_u32 v3, {sT}, v8")
    for g in range(4): e(f"buffer_load_dwordx2 {vr(RX + 2*g, 2)}, v3, {SRD_X}, 0 offen offset:{16*g}", tag="rx")
    for kl in range(36):
        e.wait(vm=f"v{kl}")
        lb, lo, reg = w2_slot(kl)
        for u in range(2):
            c, r = w2reg(kl, u)
            for m in range(2):
                e(f"ds_read_b64_tr_b16 {c}[{r+2*m}:{r+2*m+1}], v{tb[2*reg+u]} offset:{lo + 1024*m}", tag=f"t{kl}")
        if kl >= 1 and kl - 1 + W2_SLOTS < 36:
            e.wait(lg=f"t{kl-1}")
            for g in w2_dma_groups(kl - 1 + W2_SLOTS): emit_group(e, g)
    stamp(e, o, 7)
    A2 = 128
    D = o.a2_depth
    assert A2 + 8 * D <= 255
    e("v_lshlrev_b32 v8, 4, v0"); e(f"s_and_b32 {sT}, {sW}, 1"); e(f"s_lshl_b32 {sT}, {sT}, 10")
    e(f"v_add_u32 v8, {sT}, v8"); e("v_xor_b32 v9, 0x400, v8")
    e(f"s_mul_i32 {sA2}, {sT2}, 144"); e(f"s_mul_i32 {sT}, {sW}, 36"); e(f"s_add_u32 {sA2}, {sA2}, {sT}"); e(f"s_lshl_b32 {sA2}, {sA2}, 11")
    e(f"s_lshr_b32 {sT}, {sT2}, 1"); e(f"s_lshl_b32 {sT}, {sT}, 2"); e(f"s_add_u32 {sT}, {sT}, {sW}"); e(f"s_lshl_b32 {sT}, {sT}, 2"); e(f"v_mov_b32 v2, {sT}")
    def a2_load(kl):
        if kl % 2 == 0 and kl: e(f"s_add_u32 {sA2}, {sA2}, 4096")
        for u in range(2):
            e(f"buffer_load_dwordx4 {vr(A2 + 8*(kl % D) + 4*u, 4)}, v{8+u}, {SRD_WS}, {sA2} offen offset:{2048*(kl & 1)} {o.ld_pol}", tag=f"a{kl}")
    if not o.split: poll(e, o, "3" if o.flag == "atomic" else "0x0101", "L_pollF")
    stamp(e, o, 8)
    issued = 0
    def issue_upto(n):
        nonlocal issued
        while issued < min(n, 36):
            if issued == 20 and not o.split:
                return False
            a2_load(issued); issued += 1
        return True
    issue_upto(D)
    e.wait(lg=0)
    C2 = 16
    polled = o.split
    for kl in range(36):
        if not polled and issued == 20 and kl + D > 20:
            poll(e, o, "15" if o.flag == "atomic" else "0x01010101", "L_pollB"); polled = True
            stamp(e, o, 9)
            o2 = min(kl + D, 36)
            while issued < o2: a2_load(issued); issued += 1
        e.wait(vm=f"a{kl}")
        for u in range(2):
            for p in range(2):
                c, r = w2reg(kl, u)
                d = vr(C2 + 16 * (2*u + p), 16)
                e(f"v_mfma_f32_32x32x16_bf16 {d}, {c}[{r}:{r+3}], {vr(A2 + 8*(kl % D) + 4*p, 4)}, {'0' if kl == 0 else d}")
        if polled:
            while issued < min(kl + 1 + D, 36): a2_load(issued); issued += 1
        else: issue_upto(kl + 1 + D)
    stamp(e, o, 10)
    e("v_lshlrev_b32 v8, 4, v0"); e(f"v_add_u32 v9, {sRL}, v8")
    for j in range(1, 4):
        for q in range(4): e(f"ds_write_b128 v9, {vr(C2 + 16*j + 4*q, 4)} offset:{j*4096 + q*1024}", tag="red")
    for j in range(1, 4):
        e(f"s_xor_b32 {sT}, {sW}, {j}"); e(f"s_mul_i32 {sT}, {sT}, {SLOT}"); e(f"v_add_u32 v{10+j}, {sT}, v8")
    e.wait(lg=0); e("s_barrier")
    for j in range(1, 4):
        for q in range(4): e(f"ds_read_b128 {vr(C2 + 16*j + 4*q, 4)}, v{10+j} offset:{j*4096 + q*1024}", tag=f"rr{j}")
    e.wait(vm="rx")
    for g in range(4):
        for h in range(2):
            e(f"v_lshlrev_b32 v{128+4*g+2*h}, 16, v{RX+2*g+h}"); e(f"v_and_b32 v{129+4*g+2*h}, {sMSK}, v{RX+2*g+h}")
    for j in range(0, 16, 2): e(f"v_pk_add_f32 {vr(C2+j, 2)}, {vr(C2+j, 2)}, {vr(128+j, 2)}")
    for jj in range(1, 4):
        e.wait(lg=f"rr{jj}")
        for j in range(0, 16, 2): e(f"v_pk_add_f32 {vr(C2+j, 2)}, {vr(C2+j, 2)}, {vr(C2+16*jj+j, 2)}")
    for j in range(8): e(f"v_cvt_pk_bf16_f32 v{C2+j}, v{C2+2*j}, v{C2+2*j+1}")
    for g in range(4): e(f"buffer_store_dwordx2 {vr(C2 + 2*g, 2)}, v3, {SRD_OUT}, 0 offen offset:{16*g}", tag="out")
    e.label(f"L_fin_{entry}")
    e.hist = []
    if o.ts:
        stamp(e, o, 11)
        e(f"s_memrealtime s[{sTS+2}:{sTS+3}]"); e.wait(lg=0); e(f"v_writelane_b32 v255, s{sTS+2}, 14")
        e(f"s_lshl_b32 {sT}, s2, 2"); e(f"s_add_u32 {sT}, {sT}, {sW}"); e(f"s_lshl_b32 {sT}, {sT}, 6")
        e(f"s_add_u32 {sT}, {sT}, {(16 << 20) + (65536 if entry == 'k2' else 0)}")
        e("s_mov_b32 s22, 0x2000000"); e("v_lshlrev_b32 v1, 2, v0"); e("s_mov_b64 exec, 0xffff")
        e(f"buffer_store_dword v255, v1, {SRD_WS}, {sT} offen")
    e.wait(vm=0)
    if o.padus:
        if o.padmode:
            e("s_mov_b64 exec, -1"); e("v_mov_b32 v2, 0"); poll(e, o, "1", "L_pollP"); e(f"s_lshr_b32 s98, {sFLAG}, 16")
        e.label("L_pad")
        e("s_memrealtime s[96:97]"); e.wait(lg=0); e("s_sub_u32 s96, s96, s98"); e("s_and_b32 s96, s96, 0xffff"); e(f"s_cmp_lt_u32 s96, {o.padus*100}"); e("s_cbranch_scc1 L_pad")

KD = """.amdhsa_kernel {name}
  .amdhsa_next_free_vgpr 512
  .amdhsa_next_free_sgpr 102
  .amdhsa_accum_offset 256
  .amdhsa_group_segment_fixed_size 0
  .amdhsa_kernarg_size 80
  .amdhsa_user_sgpr_count 2
  .amdhsa_user_sgpr_kernarg_segment_ptr 1
  .amdhsa_system_sgpr_workgroup_id_x 1
.end_amdhsa_kernel
"""
def kernel_head(name): return f".globl {name}\n.p2align 8\n.type {name},@function\n{name}:\n"

def phase1_both(e, o, w2_pref):
    e(f"s_cmp_ge_u32 {sJJ}, 2"); e("s_cbranch_scc1 L_typeB")
    ef = e.fork(); prologue(ef, o, "F"); main_loop(ef, o, "F", w2_pref); epilogue_F(ef, o); publish(ef, o); ef("s_branch L_join")
    eb = e.fork(); prologue(eb, o, "B"); main_loop(eb, o, "B", w2_pref); epilogue_B(eb, o); publish(eb, o)
    e.lines += ef.lines; e.label("L_typeB"); e.lines += eb.lines; e.label("L_join")
    e.hist = []; e.lg = []; e.vm = [("flag", set())]
    sys.stderr.write(f"F: {ef.nins} instrs {ef.stats}\nB: {eb.nins} instrs {eb.stats}\n")

def generate(o):
    head = open("parallel_sum__sliding_local_dilated__geglu_ffn__prompt.s.ref").read().split("; Override launch")[0]
    out = head
    if o.split:
        out += f"; @launch kernel=ph1_kernel grid=(256,1,1) block=(256,1,1) lds={LDS_BYTES}\n"
        out += f"; @launch kernel=ph2_kernel grid=(256,1,1) block=(256,1,1) lds={LDS_BYTES}\n"
    else:
        out += f"; @launch grid=(256,1,1) block=(256,1,1) lds={LDS_BYTES}\n"
    out += '.amdgcn_target "amdgcn-amd-amdhsa--gfx950"\n.text\n'
    if o.split:
        e = Emitter(); setup(e, o, "k1"); phase1_both(e, o, False)
        e(f"s_mov_b32 {sS}, 28")
        phase_end = Emitter()
        e.label("L_fin_k1")
        if o.ts:
            e(f"s_memrealtime s[{sTS+2}:{sTS+3}]"); e.wait(lg=0); e(f"v_writelane_b32 v255, s{sTS+2}, 14")
            e(f"s_lshl_b32 {sT}, s2, 2"); e(f"s_add_u32 {sT}, {sT}, {sW}"); e(f"s_lshl_b32 {sT}, {sT}, 6"); e(f"s_add_u32 {sT}, {sT}, {16 << 20}")
            e("s_mov_b32 s22, 0x2000000"); e("v_lshlrev_b32 v1, 2, v0"); e("s_mov_b64 exec, 0xffff")
            e(f"buffer_store_dword v255, v1, {SRD_WS}, {sT} offen")
        e.label("L_end_k1"); e("s_endpgm")
        out += kernel_head("ph1_kernel") + e.text()
        e = Emitter(); setup(e, o, "k2"); phase2(e, o, 0, "k2"); e.label("L_end_k2"); e("s_endpgm")
        out += kernel_head("ph2_kernel") + e.text()
        out += '.section .rodata,"a"\n.p2align 6\n' + KD.format(name="ph1_kernel") + ".p2align 6\n" + KD.format(name="ph2_kernel")
    else:
        e = Emitter(); setup(e, o, "k"); phase1_both(e, o, True); phase2(e, o, W2_SLOTS, "k"); e.label("L_end_k"); e("s_endpgm")
        out += kernel_head(KN) + e.text()
        out += '.section .rodata,"a"\n.p2align 6\n' + KD.format(name=KN)
    return out

if __name__ == "__main__":
    o = Opt()
    path = sys.argv[1]
    for a in sys.argv[2:]:
        k, v = a.split("=")
        cur = getattr(o, k)
        setattr(o, k, (v == "1") if isinstance(cur, bool) else type(cur)(v.replace("+", " ")))
    open(path, "w").write(generate(o))
```

```python
import sys, math, struct
from emit import Emitter

KN = "parallel_sum__sliding_local_dilated__geglu_ffn__prompt_kernel"
def f32(x): return "0x%08x" % struct.unpack("<I", struct.pack("<f", x))[0]

CH = 5152
SLOT = 4 * CH
XST = 4 * SLOT
HALO = XST + 65536
LDS_BYTES = 163840
UPOFF_F = 10272
KX, HK, VX, HV = HALO, HALO + 4096, HALO + 6144, HALO + 10240
FLG = 32 * 144 * 2048
SH = 4096

sW = "s3"
SRD_X, SRD_WA, SRD_WG, SRD_WU, SRD_WS, SRD_DN, SRD_WO, SRD_OUT, SRD_DBG = [f"s[{4*i}:{4*i+3}]" for i in range(1, 10)]
sI, sJJ, sCG, sXCD, sS = "s40", "s41", "s42", "s43", "s44"
sROT, sK0, sKC, sT0X = "s45", "s46", "s47", "s48"
sO0, sO1, sO2, sO3 = "s49", "s50", "s51", "s52"
sMSK, sONES = "s53", "s54"
sLW, sA2 = "s55", "s56"
sT, sU, sV = "s57", "s58", "s59"
sXL, sRL = "s60", "s61"
sDN, sWO = "s62", "s63"
sG = ["s74", "s75", "s76", "s77"]; sAG = ["s78", "s79", "s80", "s81"]
sBD = ["s64", "s65"]; sBO = ["s66", "s67"]; sAB = ["s82", "s83"]
sA2F = "s68"
sK2 = "s[84:85]"; sC2 = "s[86:87]"
sT2, sN2 = "s88", "s89"
sFLAG = "s90"; sCNT = "s91"
sTS = 92
sH, sHS = "s100", "s101"
sD0, sD1, sE0, sE1 = "s98", "s99", "s96", "s97"
sF0 = [69, 70, 71, 72, 73]

BASE0 = [1, 2, 3, 4, 5]
BASE1 = [228, 229, 230, 231, 232]
vHX, vHXb, vHX2 = "v6", "v7", "v241"
vD = ["v8", "v9", "v10", "v11", "v12"]
vR, vNMR = "v13", "v14"
vW2, vW2b = "v15", "v233"
ACC0 = 16
def acc(b, lo=0, hi=15): return f"v[{ACC0+16*b+lo}:{ACC0+16*b+hi}]"
def accr(b, r): return f"v{ACC0+16*b+r}"
XN = [192, 196]
TMP = 200
MSK = 208
EX = 234
NF = 12
AFR = 112
def vr(lo, n): return f"v[{lo}:{lo+n-1}]" if n > 1 else f"v{lo}"
def ar(lo, n): return f"a[{lo}:{lo+n-1}]" if n > 1 else f"a{lo}"

class Opt:
    ts = False
    st_pol = "sc1"
    ld_pol = "sc1"
    pol_x = ""
    pol_w1 = "nt"
    pol_w2 = ""
    code_lines = 404
    a2_depth = 12
    cap = 6
    bd = 3
    dma_gap = 2
    prenorm = 1
    rot2 = False
    l2pf = False
    worder = 2
    pub_steps = 10
    w2_start = 3
    w2_loop = 6
    w2_per = 1
    l2a = 5
    l2b = 8
    epi_steps = 1
    lead_dma = 7
    mallpf = True
    pre_a2 = 3
    bstep = 2
    rx_at = 8
    few = False
    rt = False
    w1_after = 1
    hswap = True
    mall_at = 0
    leftover = 8
    bpoll = 1
    pubB_steps = 16
    lastbm = 3
    x_hot = False
    perF = 99
    perB = 5
    poll2_at = 12
    a2_first = 4
    a2_ahead = 8
    pub_at = 0
    fine = False
    padus = 0
    padmode = 0
OPT = None

def stamp(e, k):
    if OPT.ts and (not OPT.few or k in (3, 4, 5, 6, 7, 10, 11)):
        e.wait(lg=0)
        e(f"s_memtime s[{sTS}:{sTS+1}]")
        if OPT.rt: e(f"s_memrealtime s[{sTS+2}:{sTS+3}]")
        e.wait(lg=0)
        e(f"v_writelane_b32 v255, s{sTS}, {k}")
        if OPT.rt: e(f"v_writelane_b32 v255, s{sTS+2}, {32+k}")

def srd(e, reg, plo, nbytes, shift=0):
    b = int(reg[2:].split(":")[0])
    if shift:
        e(f"s_sub_u32 s{b}, s{plo}, {shift}"); e(f"s_subb_u32 s{b+1}, s{plo+1}, 0")
    else:
        e(f"s_mov_b32 s{b}, s{plo}"); e(f"s_mov_b32 s{b+1}, s{plo+1}")
    e(f"s_mov_b32 s{b+2}, {nbytes + shift}"); e(f"s_mov_b32 s{b+3}, 0x20000")

def emit_group(e, g):
    for x in g:
        if isinstance(x, tuple): e(x[0], tag=x[1])
        else: e(x)

def emit_q(e, x):
    if x[0] == "WAITV": e.wait(vm=x[1])
    elif x[0] == "WAITL": e.wait(lg=x[1])
    else: e(x[0], tag=x[1])

def x_dma(e, n):
    for q in range(4):
        e(f"s_add_u32 m0, {sXL}, {(n % 4) * 4096 + q * 1024}")
        if q: e(f"s_add_u32 {sU}, {sO0}, {q * 14336}")
        e(f"buffer_load_dwordx4 v{EX + (q & 1)}, {SRD_X}, {sU if q else sO0} offen {OPT.pol_x} lds", tag=f"x{n}")
    e(f"s_add_u32 {sROT}, {sROT}, 128"); e(f"s_cmp_eq_u32 {sROT}, 896"); e(f"s_cselect_b32 {sROT}, 0, {sROT}")
    e(f"s_add_u32 {sO0}, {sT0X}, {sROT}")

def w_dma(typ, it):
    slot = (it % 4) * SLOT
    p = OPT.pol_w1; tag = f"w{it}"
    out = [f"s_add_u32 m0, {sLW}, {slot}"]
    if typ == "F":
        out += [(f"buffer_load_dwordx4 {vD[q]}, {SRD_WA}, {sO1} offen offset:{1024*q} {p} lds", tag) for q in range(4)]
        out += [f"s_add_u32 m0, {sLW}, {slot + 4096}", (f"buffer_load_dwordx4 {vD[4]}, {SRD_WA}, {sO1} offen {p} lds", tag)]
        out += [f"s_add_u32 {sO1}, {sO1}, {sD1 if it & 1 else sD0}"]
        if it & 1: out += [f"s_cmp_ge_u32 {sO1}, {448*3584}", f"s_cselect_b32 {sO1}, {sE0}, {sO1}"]
    else:
        out += [(f"buffer_load_dwordx4 {vD[q]}, {SRD_WA}, {sO1} offen offset:{1024*q} {p} lds", tag) for q in range(3)]
        out += [(f"buffer_load_dwordx4 {vD[3]}, {SRD_WG}, {sO2} offen offset:3072 {p} lds", tag)]
        out += [f"s_add_u32 m0, {sLW}, {slot + 4128}", (f"buffer_load_dwordx4 {vD[4]}, {SRD_WU}, {sO2} offen {p} lds", tag)]
        out += [f"s_add_u32 {sO3}, {sO3}, {sD1 if it & 1 else sD0}"]
        if it & 1: out += [f"s_cmp_ge_u32 {sO3}, {448*896}", f"s_cselect_b32 {sO3}, {sE0}, {sO3}"]
        out += [f"s_mul_i32 {sO1}, {sO3}, 3", f"s_lshl_b32 {sO2}, {sO3}, 2"]
    return out

W2_SLOTS = 18
def w2_areg(j): return 160 + 8 * j if j < 12 else 8 * (j - 12)
SLOT_OF = {}
def w2_slot(j):
    s_ = SLOT_OF[j]
    return (sXL, s_ * 2048, 0) if s_ < 8 else (sRL, (s_ - 8) * 2048, 1)

def w2_dma(j):
    lb, lo, _ = w2_slot(j)
    if j < 20: srd_, base, rows = SRD_DN, sG[j // 5], 16 * (j % 5)
    else:
        h, r = divmod(j - 20, 8)
        srd_, base, rows = (SRD_DN, sBD[h], 16 * r) if r < 4 else (SRD_WO, sBO[h], 28 * ((r - 4) >> 1) + 16 * (r & 1))
    if OPT.x_hot and j >= 8: srd_, base, rows = SRD_DN, sG[0], 16 * (j % 8)
    so = sK0 if rows else base
    pre = [f"s_add_u32 {sK0}, {base}, {rows * 896}"] if rows else []
    p = OPT.pol_w2
    return [f"s_add_u32 m0, {lb}, {lo}"] + pre + [(f"buffer_load_dwordx4 {vW2}, {srd_}, {so} offen {p} lds", f"v{j}"),
            (f"buffer_load_dwordx4 {vW2b}, {srd_}, {so} offen offset:1024 {p} lds", f"v{j}")]

def setup(e):
    o = OPT
    e("s_load_dwordx16 s[64:79], s[0:1], 0"); e("s_load_dwordx4 s[80:83], s[0:1], 64")
    e(f"s_cmp_ge_u32 s2, 256"); e("s_cbranch_scc1 L_end")
    if o.padus: e("s_memrealtime s[98:99]")
    if o.ts:
        e("v_mov_b32 v255, 0"); e(f"s_memrealtime s[{sTS+2}:{sTS+3}]"); e(f"s_memtime s[{sTS}:{sTS+1}]")
    e(f"s_getpc_b64 s[{sTS+4}:{sTS+5}]")
    e(f"s_lshr_b32 {sS}, s2, 3"); e("v_lshrrev_b32 v1, 4, v0"); e(f"v_lshl_add_u32 v1, {sS}, 4, v1")
    e(f"v_min_u32 v1, {o.code_lines-1}, v1"); e("v_lshlrev_b32 v1, 7, v1")
    e(f"global_load_dword a255, v1, s[{sTS+4}:{sTS+5}]", tag="pf")
    e("v_lshrrev_b32 v1, 6, v0"); e("v_and_b32 v0, 63, v0")
    e(f"v_readfirstlane_b32 {sW}, v1")
    e(f"s_and_b32 {sXCD}, s2, 7"); e(f"s_lshr_b32 {sJJ}, {sS}, 3")
    e(f"s_and_b32 {sT}, {sXCD}, 1"); e(f"s_and_b32 {sU}, {sS}, 7"); e(f"s_lshl_b32 {sI}, {sT}, 3"); e(f"s_add_u32 {sI}, {sI}, {sU}")
    e(f"s_lshl_b32 {sXL}, {sW}, 14"); e(f"s_add_u32 {sXL}, {sXL}, {XST}")
    if o.hswap:
        e(f"s_and_b32 {sH}, {sU}, 1"); e(f"s_lshr_b32 {sT}, {sU}, 1"); e(f"s_add_u32 {sT}, {sT}, {sJJ}"); e(f"s_lshl_b32 {sT}, {sT}, 1")
        e(f"s_cmp_ge_u32 {sT}, 7"); e(f"s_cselect_b32 {sU}, 7, 0"); e(f"s_sub_u32 {sK0}, {sT}, {sU}")
    else:
        e(f"s_mov_b32 {sH}, 0")
        e(f"s_add_u32 {sT}, {sT}, {sU}"); e(f"s_lshl_b32 {sU}, {sJJ}, 1"); e(f"s_add_u32 {sT}, {sT}, {sU}")
        for _ in range(2):
            e(f"s_cmp_ge_u32 {sT}, 7"); e(f"s_cselect_b32 {sU}, 7, 0"); e(f"s_sub_u32 {sK0 if _ else sT}, {sT}, {sU}")
    e(f"s_lshl_b32 {sROT}, {sK0}, 7"); e(f"s_mov_b32 {sKC}, {sROT}")
    e(f"s_mul_i32 {sT0X}, {sI}, {128*896}"); e(f"s_add_u32 {sO0}, {sT0X}, {sROT}")
    e(f"s_lshr_b32 {sT}, {sW}, 1"); e(f"s_lshl_b32 {sT}, {sT}, 6"); e(f"s_and_b32 {sU}, {sW}, 1"); e(f"s_add_u32 {sT}, {sT}, {sU}")
    e("v_lshrrev_b32 v1, 3, v0"); e(f"v_lshl_add_u32 v1, v1, 1, {sT}"); e("v_mul_u32_u24 v1, 896, v1")
    e("v_and_b32 v2, 7, v0"); e("v_lshrrev_b32 v3, 4, v0"); e("v_xor_b32 v2, v2, v3")
    e(f"v_lshl_add_u32 v{EX}, v2, 4, v1"); e(f"v_xor_b32 v{EX+1}, 64, v{EX}")
    e("s_mov_b32 s6, 1835008"); e("s_mov_b32 s7, 0x20000")
    e.wait(lg=0)
    e("s_mov_b32 s4, s64"); e("s_mov_b32 s5, s65")
    if o.ts: e(f"v_writelane_b32 v255, s{sTS}, 0"); e(f"v_writelane_b32 v255, s{sTS+2}, 31")
    x_dma(e, 0); x_dma(e, 1)
    stamp(e, 12)
    e(f"s_lshr_b32 {sCG}, {sXCD}, 1")
    e(f"s_mov_b32 {sMSK}, 0xffff0000"); e(f"s_mov_b32 {sONES}, 0x3f803f80")

def setup_late(e):
    o = OPT
    e(f"s_mul_i32 {sRL}, {sW}, {SLOT}")
    e(f"s_and_b32 {sT2}, {sS}, 3"); e(f"s_lshl_b32 {sT}, {sXCD}, 2"); e(f"s_add_u32 {sT2}, {sT2}, {sT}")
    e(f"s_lshr_b32 {sN2}, {sS}, 2")
    e(f"s_mul_i32 {sDN}, {sW}, {448*896}"); e(f"s_mul_i32 {sWO}, {sW}, {112*896}")
    srd(e, SRD_WS, 82, FLG + 8192); srd(e, SRD_DN, 76, 1605632); srd(e, SRD_WO, 68, 401408)
    srd(e, SRD_OUT, 78, 1835008); srd(e, SRD_DBG, 80, 256)
    e(f"s_mul_i32 {sE1}, {sT2}, 144"); e(f"s_mul_i32 {sT}, {sW}, 36"); e(f"s_add_u32 {sE1}, {sE1}, {sT}"); e(f"s_lshl_b32 {sE1}, {sE1}, 11")
    e(f"s_add_u32 {sT}, {sT2}, {sN2}")
    if not o.rot2: e(f"s_mov_b32 {sT}, 0")
    for k in range(4):
        e(f"s_and_b32 {sU}, {sT}, 3"); e(f"s_mul_i32 {sV}, {sU}, {80*896}"); e(f"s_add_u32 {sV}, {sV}, {sDN}"); e(f"s_add_u32 {sG[k]}, {sV}, {128*896}")
        e(f"s_mul_i32 {sV}, {sU}, {5*2048}"); e(f"s_add_u32 {sAG[k]}, {sV}, {sE1}"); e(f"s_add_u32 {sT}, {sT}, 1")
    e(f"s_lshr_b32 {sT}, {sN2}, 1"); e(f"s_add_u32 {sT}, {sT}, {sT2}")
    if not o.rot2: e(f"s_mov_b32 {sT}, 0")
    for k in range(2):
        e(f"s_and_b32 {sU}, {sT}, 1"); e(f"s_mul_i32 {sV}, {sU}, {64*896}"); e(f"s_add_u32 {sBD[k]}, {sV}, {sDN}")
        e(f"s_mul_i32 {sV}, {sU}, {56*896}"); e(f"s_add_u32 {sBO[k]}, {sV}, {sWO}")
        e(f"s_lshl_b32 {sV}, {sU}, 14"); e(f"s_add_u32 {sV}, {sV}, {sE1}"); e(f"s_add_u32 {sAB[k]}, {sV}, {20*2048}"); e(f"s_add_u32 {sT}, {sT}, 1")
    t = EX + 6
    e(f"v_lshrrev_b32 v{t}, 3, v0"); e(f"v_mul_u32_u24 v{t}, 896, v{t}")
    e(f"v_and_b32 v{t+1}, 7, v0"); e(f"v_lshrrev_b32 v{t+2}, 2, v0"); e(f"v_and_b32 v{t+2}, 4, v{t+2}"); e(f"v_xor_b32 v{t+1}, v{t+1}, v{t+2}")
    e(f"v_lshl_add_u32 {vW2}, v{t+1}, 4, v{t}")
    e(f"s_lshl_b32 {sT}, {sN2}, 7"); e(f"s_cmp_ge_u32 {sS}, 28"); e(f"s_cselect_b32 {sT}, 0x80000000, {sT}")
    e(f"v_add_u32 {vW2}, {sT}, {vW2}"); e(f"v_add_u32 {vW2b}, {8*896 - 1024}, {vW2}")

TB = [244, 245, 246, 247]
def w2_bases(e, t):
    e(f"s_lshr_b32 {sT}, {sW}, 1")
    e(f"v_lshrrev_b32 v{t}, 5, v0"); e(f"v_bfe_u32 v{t+1}, v0, 2, 2"); e(f"v_lshl_add_u32 v{t}, v{t}, 2, v{t+1}"); e(f"v_lshlrev_b32 v{t}, 7, v{t}")
    e(f"v_bfe_u32 v{t+1}, v0, 4, 1"); e(f"v_and_b32 v{t+2}, 3, v0"); e(f"v_lshlrev_b32 v{t+2}, 3, v{t+2}"); e(f"v_lshl_add_u32 v{t+1}, v{t+1}, 5, v{t+2}")
    e(f"v_bfe_u32 v{t+2}, v0, 3, 1"); e(f"v_xor_b32 v{t+2}, {sT}, v{t+2}"); e(f"v_lshlrev_b32 v{t+2}, 6, v{t+2}"); e(f"v_add3_u32 v{t}, v{t}, v{t+1}, v{t+2}")
    e(f"v_add_u32 v{TB[0]}, {sXL}, v{t}"); e(f"v_add_u32 v{TB[2]}, {sRL}, v{t}"); e(f"v_xor_b32 v{t}, 64, v{t}")
    e(f"v_add_u32 v{TB[1]}, {sXL}, v{t}"); e(f"v_add_u32 v{TB[3]}, {sRL}, v{t}")

vRX = "v248"; vRXL = "v249"; ARX = 48
vK1 = "v[250:251]"; vST = "v252"; vPO = "v253"; vL0 = "v254"; vL1 = "v249"; VF0 = 14
XA = [234, 235, 236, 237, 238, 239, 240]
def rx_addr(e, t):
    e(f"v_and_b32 v{t}, 31, v0"); e(f"s_and_b32 {sT}, {sW}, 1"); e(f"s_lshl_b32 {sU}, {sT2}, 6"); e(f"s_add_u32 {sT}, {sT}, {sU}")
    e(f"v_lshl_add_u32 v{t}, v{t}, 1, {sT}"); e(f"v_mul_u32_u24 v{t}, 896, v{t}"); e(f"v_lshrrev_b32 v{t+1}, 5, v0"); e(f"v_lshl_add_u32 v{t}, v{t+1}, 3, v{t}")
    e(f"s_lshr_b32 {sT}, {sW}, 1"); e(f"s_lshl_b32 {sT}, {sT}, 6"); e(f"s_lshl_b32 {sU}, {sN2}, 7"); e(f"s_add_u32 {sT}, {sT}, {sU}")
    e(f"v_add_u32 {vRX}, {sT}, v{t}")
    e(f"s_and_b32 {sV}, {sW}, 1"); e(f"s_lshl_b32 {sU}, {sT2}, 6"); e(f"s_add_u32 {sV}, {sV}, {sU}")
    e(f"v_lshrrev_b32 v{t}, 2, v0"); e(f"v_lshl_add_u32 v{t}, v{t}, 1, {sV}"); e(f"v_mul_u32_u24 v{t}, 896, v{t}")
    e(f"v_and_b32 v{t+1}, 3, v0"); e(f"v_lshl_add_u32 v{t}, v{t+1}, 4, v{t}"); e(f"v_add_u32 {vRXL}, {sT}, v{t}")

def finish_stats(e, sq, sm, r, nmr, t):
    e(f"v_mul_f32 v{sm}, {f32(1/448)}, v{sm}"); e(f"v_mul_f32 v{sq}, {f32(1/448)}, v{sq}")
    e(f"v_fma_f32 v{sq}, -v{sm}, v{sm}, v{sq}"); e(f"v_max_f32 v{sq}, 0, v{sq}"); e(f"v_add_f32 v{sq}, {f32(1e-5)}, v{sq}")
    e(f"v_rsq_f32 v{r}, v{sq}")
    e(f"v_mul_f32 v{t}, v{sm}, v{r}"); e(f"v_sub_f32 v{nmr}, 0, v{t}")

def prologue(e, typ):
    o = OPT; B = typ == "B"
    vA, vB, vG0, vG1, vH = [f"v{i}" for i in BASE0]
    XR = [EX + 2 + k for k in range(4)]
    e("v_and_b32 v1, 31, v0"); e("v_lshrrev_b32 v2, 5, v0"); e("v_bfe_u32 v3, v0, 1, 3"); e("v_xor_b32 v2, v2, v3")
    e("v_lshlrev_b32 v1, 7, v1"); e(f"v_lshl_add_u32 v1, v2, 4, v1"); e(f"s_lshl_b32 {sT}, {sH}, 6"); e(f"v_xor_b32 v1, {sT}, v1"); e(f"v_add_u32 v{XR[0]}, {sXL}, v1")
    for k in range(1, 4): e(f"v_xor_b32 v{XR[k]}, {32*k}, v{XR[0]}")
    def w_steps(stride, dst):
        e(f"s_mul_i32 {sE0}, {sH}, {32*stride}"); e(f"s_mul_i32 {dst}, {sK0}, {64*stride}"); e(f"s_add_u32 {dst}, {dst}, {sE0}")
        e(f"s_lshl_b32 {sD1}, {sE0}, 1"); e(f"s_sub_u32 {sD0}, {32*stride}, {sD1}"); e(f"s_add_u32 {sD1}, {sD1}, {32*stride}")
    def w_setup():
        if B:
            srd(e, SRD_WA, 66, 1204224, SH); srd(e, SRD_WG, 72, 1605632, SH); srd(e, SRD_WU, 74, 1605632, SH)
            w_steps(896, sO3); e(f"s_mul_i32 {sO1}, {sO3}, 3"); e(f"s_lshl_b32 {sO2}, {sO3}, 2")
            e(f"s_lshl_b32 {sT}, {sW}, 3"); e("v_lshrrev_b32 v1, 3, v0"); e(f"v_add_u32 v1, {sT}, v1")
            e("v_and_b32 v2, 7, v0"); e("v_lshrrev_b32 v3, 2, v0"); e("v_and_b32 v3, 4, v3"); e("v_xor_b32 v2, v2, v3")
            e(f"s_lshl_b32 {sT}, {sCG}, 1"); e(f"s_add_u32 {sT}, {sT}, {sJJ}"); e(f"s_mul_i32 {sT}, {sT}, 112"); e(f"s_add_u32 {sT}, {sT}, {SH - 224}")
            e("v_mul_u32_u24 v3, 2688, v1"); e(f"v_lshl_add_u32 v3, v2, 4, v3"); e(f"v_add_u32 v3, {sT}, v3")
            e("v_cmp_eq_u32 vcc, 7, v2"); e("v_mov_b32 v4, 0x80000000"); e(f"v_cndmask_b32 {vD[0]}, v3, v4, vcc")
            e(f"v_subrev_u32 {vD[1]}, 128, {vD[0]}"); e(f"v_subrev_u32 {vD[2]}, 256, {vD[0]}")
            e(f"s_mul_i32 {sT}, {sCG}, 896"); e(f"s_lshl_b32 {sU}, {sJJ}, 7"); e(f"s_add_u32 {sT}, {sT}, {sU}"); e(f"s_add_u32 {sT}, {sT}, {SH - 256}")
            e("v_mul_u32_u24 v3, 3584, v1"); e(f"v_lshl_add_u32 v3, v2, 4, v3"); e(f"v_add_u32 {vD[4]}, {sT}, v3"); e(f"v_subrev_u32 {vD[3]}, 3072, {vD[4]}")
            e(f"s_mul_i32 {sLW}, {sW}, {CH}")
        else:
            e(f"s_cmp_ge_u32 {sW}, 2"); e("s_cselect_b32 s8, s74, s72"); e("s_cselect_b32 s9, s75, s73")
            e(f"s_sub_u32 s8, s8, {SH}"); e("s_subb_u32 s9, s9, 0"); e(f"s_mov_b32 s10, {1605632 + SH}"); e("s_mov_b32 s11, 0x20000")
            w_steps(3584, sO1)
            e(f"s_and_b32 {sU}, {sW}, 1"); e(f"s_mul_i32 {sV}, {sU}, 320")
            e(f"s_mul_i32 {sT}, {sCG}, 896"); e(f"s_mul_i32 {sO2}, {sJJ}, 320"); e(f"s_add_u32 {sT}, {sT}, {sO2}"); e(f"s_add_u32 {sT}, {sT}, {256 + SH}")
            for q in range(5):
                e(f"v_add_u32 v1, {sV}, v0")
                if q: e(f"v_add_u32 v1, {64*q}, v1")
                e("v_mul_u32_u24 v2, 3277, v1"); e("v_lshrrev_b32 v2, 16, v2")
                e("v_mul_u32_u24 v3, 20, v2"); e("v_sub_u32 v3, v1, v3")
                e("v_mul_u32_u24 v2, 3584, v2"); e(f"v_lshl_add_u32 v2, v3, 4, v2"); e(f"v_add_u32 {vD[q]}, {sT}, v2")
                if 0 < q < 4: e(f"v_subrev_u32 {vD[q]}, {1024*q}, {vD[q]}")
            e(f"s_mul_i32 {sLW}, {sU}, 5120"); e(f"s_lshr_b32 {sU}, {sW}, 1"); e(f"s_mul_i32 {sU}, {sU}, {UPOFF_F}"); e(f"s_add_u32 {sLW}, {sLW}, {sU}")
    t = EX + 6
    def bases():
        e(f"v_lshrrev_b32 v{t}, 5, v0"); e(f"v_bfe_u32 v{t+1}, v0, 2, 2"); e(f"v_bfe_u32 v{t+2}, v0, 4, 1")
        e(f"v_and_b32 v{t+3}, 3, v0"); e(f"v_lshlrev_b32 v{t+3}, 3, v{t+3}")
        if B:
            e(f"v_bfe_u32 v{t+4}, v0, 3, 1"); e(f"v_lshlrev_b32 v{t+4}, 6, v{t+4}")
            e(f"v_mul_u32_u24 v{t}, {CH}, v{t}"); e(f"v_lshl_add_u32 v{t}, v{t+1}, 7, v{t}")
            e(f"v_lshl_add_u32 v{t+5}, v{t+2}, 5, v{t+3}")
            e(f"v_xor_b32 {vA}, v{t+5}, v{t+4}"); e(f"v_add_u32 {vA}, {vA}, v{t}")
            e(f"v_add_u32 v{t+5}, 56, v{t+5}"); e(f"v_xor_b32 {vB}, v{t+5}, v{t+4}"); e(f"v_add_u32 {vB}, {vB}, v{t}")
            e(f"v_mul_u32_u24 v{t+5}, 1056, v{t+2}"); e(f"v_add3_u32 v{t+5}, v{t+5}, v{t+3}, v{t}")
            e(f"v_add_u32 {vG0}, v{t+5}, v{t+4}"); e(f"v_xor_b32 v{t+4}, 64, v{t+4}"); e(f"v_add_u32 {vG1}, v{t+5}, v{t+4}")
            e(f"s_cmp_ge_u32 {sW}, 2"); e(f"s_cselect_b64 vcc, -1, 0"); e(f"v_cndmask_b32 {vH}, {vA}, {vB}, vcc")
            e(f"s_and_b32 {sT}, {sW}, 1"); e(f"s_add_u32 {sT}, {sT}, 1"); e(f"s_lshl_b32 {sT}, {sT}, 10"); e(f"v_add_u32 {vH}, {sT}, {vH}")
            e(f"v_and_b32 v{t}, 15, v0"); e(f"v_mul_u32_u24 v{t}, 912, v{t}"); e(f"v_lshrrev_b32 v{t+1}, 5, v0")
            e(f"v_lshl_add_u32 v{t}, v{t+1}, 4, v{t}")
            e(f"s_lshl_b32 {sT}, {sH}, 6"); e(f"s_add_u32 {sT}, {sT}, {HALO}"); e(f"v_add_u32 {vHXb}, {sT}, v{t}")
            e(f"s_lshl_b32 {sT}, {sH}, 7"); e(f"s_sub_u32 {sHS}, 64, {sT}")
            for k in range(5): e(f"v_add_u32 v{BASE1[k]}, {2*SLOT}, v{BASE0[k]}")
        else:
            e(f"v_lshl_add_u32 v{t}, v{t}, 3, v{t+1}")
            e(f"v_mul_u32_u24 v{t}, 320, v{t}"); e(f"v_mul_u32_u24 v{t+2}, {UPOFF_F}, v{t+2}"); e(f"v_add3_u32 {vA}, v{t}, v{t+2}, v{t+3}")
            e(f"v_add_u32 v{BASE1[0]}, {2*SLOT}, {vA}")
    def masks():
        e(f"v_and_b32 v{t}, 31, v0"); e(f"v_lshrrev_b32 v{t+1}, 5, v0"); e(f"v_lshlrev_b32 v{t+1}, 2, v{t+1}")
        e(f"v_sub_u32 v{t}, v{t}, v{t+1}"); e(f"v_mov_b32 v{t+2}, {f32(-1e30)}"); e(f"v_mov_b32 v{t+3}, 0")
        for r in range(0, 16, 2):
            i0 = 8 * (r >> 2) + (r & 3)
            e(f"v_subrev_u32 v{t+1}, {i0}, v{t}"); e(f"v_subrev_u32 v{t+4}, {i0+1}, v{t}")
            e(f"v_cmp_gt_u32 vcc, 8, v{t+1}"); e(f"v_cmp_gt_u32 s[90:91], 8, v{t+4}")
            e("s_nop 0")
            e(f"v_cndmask_b32 v{MSK+r}, v{t+2}, v{t+3}, vcc"); e(f"v_cndmask_b32 v{MSK+r+1}, v{t+2}, v{t+3}, s[90:91]")
        e(f"s_cmp_eq_u32 {sI}, 0"); e(f"s_cselect_b32 {sT}, 2, 0"); e(f"s_cmp_lt_u32 {sW}, {sT}"); e(f"s_cselect_b32 {sT}, 100, 1")
        e(f"v_add_u32 v{t}, {sT}, v{t}")
        for r in range(4):
            e(f"v_cmp_ge_i32 vcc, {r}, v{t}"); e(f"v_cndmask_b32 v{MSK+16+r}, v{t+2}, v{t+3}, vcc")
    S = [TMP + k for k in range(4)]
    for k in range(4): e(f"v_mov_b32 v{S[k]}, 0")
    def x_read(n):
        if n == 0: stamp(e, 20)
        e.wait(vm=f"x{n}")
        if n in (0, 6): stamp(e, 13 + n)
        for kk in range(4):
            e(f"ds_read_b128 {vr(ACC0 + 4*kk + 16*(n & 1), 4)}, v{XR[kk]} offset:{(n % 4) * 4096}", tag=f"xs{n}")
        for kk in range(4):
            e(f"ds_read_b128 {ar(16*n + 4*kk, 4)}, v{XR[kk]} offset:{(n % 4) * 4096}", tag=f"xa{n}")
    def x_stats(n):
        e.wait(lg=f"xs{n}")
        for d in range(16):
            r = ACC0 + 16 * (n & 1) + d
            e(f"v_dot2c_f32_bf16 v{S[d & 1]}, v{r}, v{r}")
            e(f"v_dot2c_f32_bf16 v{S[2 + (d & 1)]}, {sONES}, v{r}")
    def halo_dma():
        e(f"v_lshlrev_b32 v{t}, 4, v0")
        e(f"s_and_b32 {sT}, {sW}, 1"); e(f"s_mul_i32 {sT}, {sT}, {8*896}"); e(f"s_lshr_b32 {sU}, {sW}, 1"); e(f"s_mul_i32 {sU}, {sU}, 896")
        e(f"s_sub_u32 {sT}, {sT}, {sU}"); e(f"s_add_u32 {sT}, {sT}, {sT0X}"); e(f"s_sub_u32 {sT}, {sT}, {15*896}")
        e(f"s_cmp_eq_u32 {sI}, 0"); e(f"s_cselect_b32 {sT}, 0x40000000, {sT}")
        e(f"s_mul_i32 {sU}, {sW}, {4*912}")
        e("s_mov_b32 exec_hi, 0x00ffffff")
        for q in range(4):
            e(f"s_add_u32 m0, {sU}, {HALO + q*912}")
            if q: e(f"s_add_u32 {sT}, {sT}, {2*896}")
            e(f"buffer_load_dwordx4 v{t}, {SRD_X}, {sT} offen lds", tag="halo")
        e("s_mov_b32 exec_hi, -1")
    def halo_norm():
        h = ACC0 + 32; u = ACC0 + 48
        e(f"v_lshrrev_b32 v{u}, 4, v0"); e(f"s_lshl_b32 {sT}, {sW}, 2"); e(f"v_add_u32 v{u}, {sT}, v{u}"); e(f"v_mul_u32_u24 v{u}, 912, v{u}")
        e(f"v_and_b32 v{u+1}, 15, v0"); e(f"v_mul_u32_u24 v{u+1}, 56, v{u+1}"); e(f"v_add_u32 v{u}, v{u}, v{u+1}"); e(f"v_add_u32 v{u}, {HALO}, v{u}")
        e(f"v_mov_b32 v{u+1}, 0"); e(f"v_mov_b32 v{u+2}, 0")
        e.wait(vm="halo")
        for m in range(7): e(f"ds_read_b64 {vr(h + 2*m, 2)}, v{u} offset:{8*m}", tag="hr")
        e.wait(lg="hr")
        for d in range(14):
            e(f"v_dot2c_f32_bf16 v{u+1}, v{h+d}, v{h+d}"); e(f"v_dot2c_f32_bf16 v{u+2}, {sONES}, v{h+d}")
        for sh in (8, 4, 2, 1):
            e(f"v_add_f32_dpp v{u+1}, v{u+1}, v{u+1} row_ror:{sh} row_mask:0xf bank_mask:0xf")
            e(f"v_add_f32_dpp v{u+2}, v{u+2}, v{u+2} row_ror:{sh} row_mask:0xf bank_mask:0xf")
        finish_stats(e, u + 1, u + 2, u + 4, u + 6, u + 3)
        for d in range(0, 14, 2):
            for k in range(2):
                e(f"v_lshlrev_b32 v{u+8+2*k}, 16, v{h+d+k}"); e(f"v_and_b32 v{u+9+2*k}, {sMSK}, v{h+d+k}")
            for k in range(2):
                e(f"v_pk_fma_f32 {vr(u+8+2*k, 2)}, {vr(u+8+2*k, 2)}, {vr(u+4, 2)}, {vr(u+6, 2)} op_sel_hi:[1,0,0]")
            for k in range(2): e(f"v_cvt_pk_bf16_f32 v{h+d+k}, v{u+8+2*k}, v{u+9+2*k}")
        for m in range(7): e(f"ds_write_b64 v{u}, {vr(h + 2*m, 2)} offset:{8*m}", tag="hw")
    w_setup(); setup_late(e); bases()
    x_dma(e, 2); x_dma(e, 3)
    wq = w_dma(typ, 0)
    def w_issue(n):
        while n > 0 and wq:
            x = wq.pop(0)
            if isinstance(x, tuple): e(x[0], tag=x[1]); n -= 1
            else: e(x)
    sched = {2: [0, 0, 0, 0, 2, 3, 0], 1: [0, 0, 0, 2, 3, 0, 0], 0: [0, 0, 5, 0, 0, 0, 0], 3: [0, 0, 0, 0, 0, 5, 0]}[o.worder]
    x_read(0)
    for n in range(7):
        if n + 1 < 7: x_read(n + 1)
        if n < 3:
            e.wait(lg=f"xa{n}"); x_dma(e, n + 4)
            if n == 2 and B: halo_dma()
        w_issue(sched[n])
        x_stats(n)
    emit_group(e, wq)
    stamp(e, 1)
    e(f"v_add_f32 v{S[0]}, v{S[0]}, v{S[1]}"); e(f"v_add_f32 v{S[2]}, v{S[2]}, v{S[3]}")
    e(f"v_mov_b32 v{S[1]}, v{S[0]}"); e(f"v_mov_b32 v{S[3]}, v{S[2]}")
    e(f"v_permlane32_swap_b32 v{S[0]}, v{S[1]}"); e(f"v_permlane32_swap_b32 v{S[2]}, v{S[3]}")
    e(f"v_add_f32 v{S[0]}, v{S[0]}, v{S[1]}"); e(f"v_add_f32 v{S[2]}, v{S[2]}, v{S[3]}")
    finish_stats(e, S[0], S[2], int(vR[1:]), int(vNMR[1:]), S[1])
    if B: halo_norm()
    if B: masks()
    w2_bases(e, t); rx_addr(e, t); epi_setup(e, typ)
    stamp(e, 2)

def xn_ops(ks, inplace=False):
    b = XN[ks & 1]; t = TMP
    ops = [f"v_accvgpr_read_b32 v{t+4+j}, a{4*ks+j}" for j in range(4)]
    ops += [f"v_lshlrev_b32 v{t+j}, 16, v{t+4+j}" for j in range(4)]
    ops += [f"v_and_b32 v{t+4+j}, {sMSK}, v{t+4+j}" for j in range(4)]
    ops += [f"v_fma_f32 v{t+j}, v{t+j}, {vR}, {vNMR}" for j in range(8)]
    ops += [f"v_cvt_pk_bf16_f32 v{b+j}, v{t+j}, v{t+4+j}" for j in range(4)]
    if inplace: ops += [f"v_accvgpr_write_b32 a{4*ks+j}, v{b+j}" for j in range(4)]
    return ops

def l2pf_ops(part):
    t = 241
    if part == 0:
        return [f"s_lshl_b32 {sV}, {sS}, 2", f"s_add_u32 {sV}, {sV}, {sW}", f"s_mul_i32 {sO3}, {sV}, {98*128}", f"v_lshlrev_b32 v{t}, 6, v0",
                (f"buffer_load_dword a254, v{t}, {SRD_DN}, {sO3} offen", "pf"),
                (f"buffer_load_dword a253, v{t}, {SRD_DN}, {sO3} offen offset:4032", "pf"), f"s_add_u32 {sO3}, {sO3}, 8128"]
    return [(f"buffer_load_dword a252, v{t}, {SRD_DN}, {sO3} offen", "pf"), f"v_min_u32 v{t}, {6*64}, v{t}",
            (f"buffer_load_dword a251, v{t}, {SRD_DN}, {sO3} offen offset:4032", "pf"),
            f"s_mul_i32 {sO3}, {sV}, {25*128}", f"v_lshlrev_b32 v{t}, 6, v0", (f"buffer_load_dword a250, v{t}, {SRD_WO}, {sO3} offen", "pf")]

def main_loop(e, typ):
    o = OPT; B = typ == "B"
    frags = []; mf = []
    for it in range(14):
        so = (it % 2) * SLOT
        bs = [f"v{i}" for i in (BASE0 if it % 4 < 2 else BASE1)]
        for kk in range(2):
            ks = 2 * it + kk
            def add(reads):
                frags.append((it, reads)); return len(frags) - 1
            def tr(base, off, step): return [("ds_read_b64_tr_b16", base, off + step * m, 2 * m, 2) for m in range(2)]
            if B:
                for b in range(10):
                    if b < 6: f = add(tr(bs[0] if b < 3 else bs[1], so + kk * 2 * CH + (b % 3) * 1024, 512))
                    else: f = add(tr(bs[2] if b < 8 else bs[3], so + kk * 2 * CH + 3072 + 32 * (b & 1), 512))
                    mf.append((ks, b, f, None, b in (2, 5)))
                f = add(tr(bs[4], so + kk * 2 * CH, 512))
                f2 = add([("ds_read_b128", vHX2 if it & 1 else vHX, 32 * kk, 0, 4)])
                mf.append((ks, 10, f, f2, True))
            else:
                for b in range(10):
                    f = add(tr(bs[0], so + 16 * kk * 320 + 32 * b, 1280))
                    mf.append((ks, b, f, None, False))
    nb = 11 if B else 10
    last_use = {}
    for mi, (ks, b, f, f2, sw) in enumerate(mf):
        last_use[f] = mi
        if f2 is not None: last_use[f2] = mi
    def freg(f): return AFR + 4 * (f % NF)
    P = o.prenorm
    def early_requests():
        emit_group(e, w_dma(typ, 1)); flags_entry_load(e, 242)
        if o.mallpf:
            e(f"s_lshl_b32 {sT}, s2, 2"); e(f"s_add_u32 {sT}, {sT}, {sW}"); e(f"s_mul_i32 {sU}, {sT}, {13*128}")
            e(f"v_min_u32 v199, 25, v0"); e(f"v_lshlrev_b32 v199, 6, v199")
            e(f"buffer_load_dword a254, v199, {SRD_DN}, {sU} offen", tag="pf")
            e(f"s_lshl_b32 {sU}, {sT}, 9"); e(f"v_min_u32 v199, {7*64}, v199")
            e(f"buffer_load_dword a253, v199, {SRD_WO}, {sU} offen", tag="pf")
    for ks in range(P):
        if ks == o.w1_after: early_requests()
        for op in xn_ops(ks, inplace=True): e(op)
    if o.w1_after >= P: early_requests()
    if B:
        e(f"v_add_u32 {vHX}, {sKC}, {vHXb}"); e(f"v_add_u32 {vHX2}, {sHS}, {vHX}")
    e.wait(vm="w0", lg=0); e("s_barrier")
    stamp(e, 3)
    opened = 0
    rq = [(f, r) for f, (it, reads) in enumerate(frags) for r in reads]
    rpos = 0
    dq = w_dma(typ, 2) + w_dma(typ, 3)
    vq = []
    bar_at = None
    w2n = 0
    xq = []
    last_dma = -10
    def pop_salu():
        x = dq.pop(0); e(x)
        n = 1
        if x.startswith("s_cmp"):
            while dq and isinstance(dq[0], str) and dq[0].startswith("s_cselect"): e(dq.pop(0)); n += 1
        return n
    for mi, (ks, b, f, f2, sw) in enumerate(mf):
        if b == 0 and P <= ks + 1 < 28: xq = xn_ops(ks + 1)
        n0 = e.nins
        used = lambda: e.nins - n0
        tgt = f2 if f2 is not None else f
        if e.has_lg(f"f{tgt}") or e.has_lg(f"f{f}"):
            for ahead in (2, 1):
                if mi + ahead < len(mf):
                    nf = mf[mi + ahead][3] if mf[mi + ahead][3] is not None else mf[mi + ahead][2]
                    tags = [t for t, _ in e.lg]
                    if f"f{nf}" in tags and (rpos >= len(rq) or rq[rpos][0] > nf) and len(tags) - 1 - max(i for i, t in enumerate(tags) if t == f"f{nf}") >= 6:
                        tgt = nf; break
            e.wait(lg=f"f{tgt}"); e.wait(lg=f"f{f}")
        if bar_at is not None and mi >= bar_at:
            nxt = opened + 1
            while any(isinstance(x, tuple) and x[1] == f"w{nxt}" for x in dq):
                x = dq[0]
                if isinstance(x, tuple): dq.pop(0); emit_q(e, x)
                elif x.startswith("v_"): e(dq.pop(0))
                else: pop_salu()
            e.wait(vm=(f"w{nxt}" if nxt < 14 else None), lg=0); e("s_barrier")
            opened = nxt; bar_at = None
            if nxt == 2: flags_entry_keep(e, 242)
            if nxt in (1, 2, 4, 8, 12, 14): stamp(e, 21 + (1, 2, 4, 8, 12, 14).index(nxt))
            if nxt + 3 < 14:
                k = 0
                while k < len(dq) and isinstance(dq[k], tuple) and dq[k][0].endswith("lds"): k += 1
                for i, x in enumerate(dq):
                    if (isinstance(x, tuple) and x[1] and x[1].startswith("w")) or (isinstance(x, str) and any(r in x for r in (sO1, sO2, sO3))): k = max(k, i + 1)
                dq[k:k] = w_dma(typ, nxt + 3)
            if nxt == o.w2_start:
                for j in range(8): dq += w2_dma(j)
            if o.w2_start + 2 <= nxt < 14:
                for _ in range(o.w2_per if nxt < 11 else o.w2_per + 1):
                    if w2n < o.w2_loop:
                        dq += [("WAITV", f"v{w2n}")] + w2_move_ops(w2n) + [("WAITL", f"t{w2n}")] + w2_dma(w2n + 8); w2n += 1
            if nxt == o.rx_at: dq[0:0] = [f"s_mov_b32 {sT}, {32*896}", (f"buffer_load_dwordx4 {ar(ARX, 4)}, {vRXL}, {SRD_X}, 0 offen", "rx"),
                                          (f"buffer_load_dwordx4 {ar(ARX + 4, 4)}, {vRXL}, {SRD_X}, {sT} offen", "rx")]
            if o.l2pf and nxt in (o.l2a, o.l2b): dq += l2pf_ops(0 if nxt == o.l2a else 1)
            if B and nxt % 2 == 0 and nxt < 14:
                e(f"s_add_u32 {sKC}, {sKC}, 128"); e(f"s_cmp_eq_u32 {sKC}, 896"); e(f"s_cselect_b32 {sKC}, 0, {sKC}")
                vq.append(f"v_add_u32 {vHX}, {sKC}, {vHXb}"); vq.append(f"v_add_u32 {vHX2}, {sHS}, {vHX}")
        lead = (rq[rpos][0] - f) if rpos < len(rq) else 99
        gaps_left = max(1, nb - 1 - b)
        quota = (-(-len(xq) // gaps_left) if b < nb - 1 else len(xq))
        room = o.cap - used()
        want_r = 3 if lead < 8 else 2
        if mi == 0: want_r = 14; room = 99
        can_read = rpos < len(rq) and frags[rq[rpos][0]][0] <= opened
        res_r = want_r if can_read else 0
        while dq and isinstance(dq[0], str) and dq[0].startswith("s_") and used() + res_r + quota < o.cap: pop_salu()
        def try_read():
            nonlocal rpos, bar_at
            if rpos >= len(rq): return False
            ff, (mn, base, off, sub, n) = rq[rpos]
            slab = frags[ff][0]
            if slab > opened or (ff >= NF and last_use[ff - NF] >= mi) or len(e.lg) >= 14: return False
            if base in (vHX, vHX2) and vq: return False
            e(f"{mn} {ar(freg(ff) + sub, n)}, {base} offset:{off}", tag=f"f{ff}")
            rpos += 1
            if rpos == len(rq) or frags[rq[rpos][0]][0] != slab: bar_at = mi + o.bd
            return True
        while dq and isinstance(dq[0], tuple) and dq[0][0].startswith("WAIT"):
            if dq[0][0] == "WAITL" and e.has_lg(dq[0][1]) and len(e.lg) - 1 - max(i for i, (t_, _) in enumerate(e.lg) if t_ == dq[0][1]) < 6: break
            emit_q(e, dq.pop(0))
        dma_ok = dq and isinstance(dq[0], tuple) and dq[0][0].startswith("buffer") and mi - last_dma >= o.dma_gap
        k = 0
        while k < want_r and (mi == 0 or used() + quota + (1 if dma_ok and lead >= o.lead_dma else 0) < o.cap or (lead < 5 and k < 2)) and try_read(): k += 1
        while dq and isinstance(dq[0], tuple) and dq[0][0].startswith("ds_") and k < 3 and used() + quota < o.cap and len(e.lg) < 14:
            emit_q(e, dq.pop(0)); k += 1
        if dma_ok and used() + quota < o.cap + (1 if len(dq) > 40 else 0):
            x = dq.pop(0); e(x[0], tag=x[1]); last_dma = mi
        while vq: e(vq.pop(0))
        k = 0
        while xq and (k < quota or used() < o.cap): e(xq.pop(0)); k += 1
        while dq and isinstance(dq[0], str) and used() < o.cap:
            if dq[0].startswith("v_"): e(dq.pop(0))
            else: pop_salu()
        assert rpos >= len(rq) or rq[rpos][0] > max(f, f2 or 0), "fragment reads fell behind at mfma %d" % mi
        w = ar(freg(f), 4)
        x = (ar(4 * ks, 4) if ks < P else vr(XN[ks & 1], 4)) if f2 is None else ar(freg(f2), 4)
        e.wait(lg=f"f{f}")
        if f2 is not None: e.wait(lg=f"f{f2}")
        a_, b_ = (x, w) if sw else (w, x)
        e(f"v_mfma_f32_32x32x16_bf16 {acc(b)}, {a_}, {b_}, {'0' if ks == 0 else acc(b)}")
    assert rpos == len(rq)
    if bar_at is not None:
        e.wait(lg=0); e("s_barrier")
    if dq: sys.stderr.write(f"{typ}: {len(dq)} queue items left after the loop\n")
    for x in dq: emit_q(e, x) if isinstance(x, tuple) else e(x)
    assert w2n == o.w2_loop
    return w2n

K1 = -2.0 * math.sqrt(2.0 / math.pi) * math.log2(math.e)
K2 = K1 * 0.044715
TB = [244, 245, 246, 247]

NMOVE = 18
def plan_slots(nloop):
    SLOT_OF.clear()
    for j in range(8): SLOT_OF[j] = j
    for j in range(8, 8 + nloop): SLOT_OF[j] = SLOT_OF[j - 8]
    for k in range(10): SLOT_OF[8 + nloop + k] = 8 + k
    for j in range(18 + nloop, 36): SLOT_OF[j] = SLOT_OF[j - 18]

def w2_move_ops(j):
    _, lo, reg = w2_slot(j)
    return [(f"ds_read_b64_tr_b16 {ar(w2_areg(j) + 4*u + 2*m, 2)}, v{TB[2*reg+u]} offset:{lo + 1024*m}", f"t{j}") for u in range(2) for m in range(2)]

class W2T:
    def __init__(self, e, nloop, period):
        self.e = e; self.q = []; self.acc = 0; self.period = period; self.mark = e.nins
        req = 8 + nloop; mov = nloop
        def dma(j, pre=[]):
            g = globals()['w2_dma']
            self.q.append(("D0", j, pre)); self.q.append(("D1", j, []))
        while req < 36 or mov < NMOVE:
            if req < 18 + nloop: dma(req); req += 1
            elif req < 36 and req - 18 < mov: dma(req, [("WAITL", f"t{req - 18}")]); req += 1
            if mov < NMOVE and req >= min(18 + nloop, 8 + nloop + 4) and (mov < 8 + nloop or req >= mov + 6):
                self.q.append(("MV", mov, [])); mov += 1
    def pop(self):
        e = self.e
        kind, j, pre = self.q.pop(0)
        for x in pre: emit_q(e, x)
        if kind == "OPS": emit_group(e, j)
        elif kind == "MV":
            e.wait(vm=f"v{j}"); emit_group(e, w2_move_ops(j))
        else:
            ops = w2_dma(j)
            k = [i for i, x in enumerate(ops) if isinstance(x, tuple)][0] + 1
            emit_group(e, ops[:k] if kind == "D0" else ops[k:])
        self.mark = e.nins
    def tick(self):
        if self.left() and self.e.nins - self.mark >= self.period: self.pop()
    def step(self, n=1):
        for _ in range(n):
            if self.left(): self.pop()
    def left(self): return len(self.q) - OPT.leftover
    def done(self): return not self.left()
    def front(self, groups):
        k = 1 if self.q and self.q[0][0] == "D1" else 0
        self.q[k:k] = [("OPS", g, []) for g in groups]

TICK = [None]
def tick():
    if TICK[0]: TICK[0].tick()

def gelu_block(e, b, off):
    t = TMP
    g = lambda p: acc(b, 2*p, 2*p+1); u = lambda p: acc(b, 8+2*p, 9+2*p); tt = lambda p: vr(t + 2*p, 2)
    for p in range(4): e(f"v_pk_mul_f32 {tt(p)}, {g(p)}, {g(p)}")
    for p in range(4): e(f"v_pk_fma_f32 {tt(p)}, {tt(p)}, {sK2}, {vK1}")
    tick()
    for p in range(4): e(f"v_pk_mul_f32 {tt(p)}, {tt(p)}, {g(p)}")
    for j in range(4): e(f"v_exp_f32 v{t+j}, v{t+j}")
    tick()
    for j in range(4, 8): e(f"v_exp_f32 v{t+j}, v{t+j}")
    for p in range(4): e(f"v_pk_mul_f32 {u(p)}, {u(p)}, {g(p)}")
    tick()
    for p in range(4): e(f"v_pk_add_f32 {tt(p)}, {tt(p)}, 1.0 op_sel_hi:[1,0]")
    for j in range(4): e(f"v_rcp_f32 v{t+j}, v{t+j}")
    tick()
    for j in range(4, 8): e(f"v_rcp_f32 v{t+j}, v{t+j}")
    for p in range(4): e(f"v_pk_mul_f32 {u(p)}, {u(p)}, {tt(p)}")
    tick()
    for p in range(4): e(f"v_cvt_pk_bf16_f32 {accr(b, p)}, {accr(b, 8+2*p)}, {accr(b, 9+2*p)}")
    a2_store(e, acc(b, 0, 3), off)

def a2_store(e, data, kl_rel):
    if kl_rel & 1 == 0: e(f"s_add_u32 {sT}, {sA2}, {kl_rel * 2048}")
    e(f"buffer_store_dwordx4 {data}, {vST}, {SRD_WS}, {sT} offen offset:{2048 * (kl_rel & 1)} {OPT.st_pol}", tag="st")

def epi_setup(e, typ):
    e(f"s_mov_b32 s84, {f32(K2)}"); e(f"s_mov_b32 s85, {f32(K2)}")
    e(f"s_lshr_b32 {sT}, {sW}, 1"); e(f"s_lshl_b32 {sA2}, {sI}, 1"); e(f"s_add_u32 {sA2}, {sA2}, {sT}"); e(f"s_mul_i32 {sA2}, {sA2}, 144")
    e(f"s_mul_i32 {sU}, {sCG}, 36"); e(f"s_add_u32 {sA2}, {sA2}, {sU}")
    if typ == "F": e(f"s_mul_i32 {sU}, {sJJ}, 10")
    else: e(f"s_lshl_b32 {sU}, {sJJ}, 3"); e(f"s_add_u32 {sU}, {sU}, 4")
    e(f"s_add_u32 {sA2}, {sA2}, {sU}"); e(f"s_lshl_b32 {sA2}, {sA2}, 1"); e(f"s_and_b32 {sU}, {sW}, 1"); e(f"s_add_u32 {sA2}, {sA2}, {sU}")
    e(f"s_lshl_b32 {sA2}, {sA2}, 10")
    e(f"v_mov_b32 v250, {f32(K1)}"); e(f"v_mov_b32 v251, {f32(K1)}"); e(f"v_lshlrev_b32 {vST}, 4, v0")
    e(f"s_lshl_b32 {sU}, {sU}, 10"); e(f"s_cmp_ge_u32 {sS}, 28"); e(f"s_cselect_b32 {sU}, 0x80000000, {sU}"); e(f"v_add_u32 {vL0}, {sU}, {vST}")
    e(f"s_lshr_b32 {sT}, {sT2}, 1"); e(f"s_lshl_b32 {sT}, {sT}, 2"); e(f"s_add_u32 {sT}, {sT}, {sW}"); e(f"s_lshl_b32 {sT}, {sT}, 7")
    e(f"v_and_b32 {vPO}, 3, v0"); e(f"v_lshl_add_u32 {vPO}, {vPO}, 2, {sT}"); e(f"s_mov_b32 {sO0}, {FLG}")
    if typ == "B":
        c = 28 ** -0.5 * math.log2(math.e)
        e(f"s_mov_b32 s86, {f32(c)}"); e(f"s_mov_b32 s87, {f32(c)}")
        kw, vw, hw, kr0, kr1, vr0, vr1 = [f"v{i}" for i in XA]
        e(f"v_and_b32 {kr0}, 7, v0"); e(f"v_lshlrev_b32 {kr0}, 6, {kr0}"); e(f"v_lshrrev_b32 {kr1}, 5, v0"); e(f"v_lshl_add_u32 {kr0}, {kr1}, 3, {kr0}")
        e(f"s_lshl_b32 {sT}, {sW}, 10"); e(f"s_add_u32 {sU}, {sT}, {VX}"); e(f"s_add_u32 {sT}, {sT}, {KX}"); e(f"v_add_u32 {kw}, {sT}, {kr0}")
        e(f"v_lshlrev_b32 {vr0}, 3, v0"); e(f"v_add_u32 {vw}, {sU}, {vr0}")
        e(f"v_and_b32 {hw}, 31, v0"); e(f"v_lshlrev_b32 {hw}, 1, {hw}"); e(f"v_lshl_add_u32 {hw}, {kr1}, 8, {hw}")
        e(f"s_bitcmp1_b32 {sW}, 0"); e("s_cselect_b64 vcc, -1, 0"); e(f"s_cselect_b32 {sT}, {HV - HK}, 0"); e(f"v_cndmask_b32 {hw}, {hw}, {vr0}, vcc")
        e(f"s_lshr_b32 {sU}, {sW}, 1"); e(f"s_lshl_b32 {sU}, {sU}, 10"); e(f"s_add_u32 {sT}, {sT}, {sU}"); e(f"s_add_u32 {sT}, {sT}, {HK}"); e(f"v_add_u32 {hw}, {sT}, {hw}")
        e(f"s_and_b32 {sT}, {sW}, 1"); e(f"s_lshl_b32 {sU}, {sT}, 10"); e(f"s_lshl_b32 {sT}, {sT}, 9")
        e(f"s_sub_u32 {sV}, {HK + 512}, {sT}"); e(f"s_add_u32 s90, {sU}, {KX}"); e(f"s_add_u32 {sT}, {sT}, {HV}"); e(f"s_add_u32 {sU}, {sU}, {VX}")
        e(f"s_cmp_lt_u32 {sW}, 2"); e(f"s_cselect_b32 {sV}, {sV}, s90"); e(f"s_cselect_b32 {sT}, {sT}, {sU}"); e(f"s_cselect_b32 {sU}, 2, 1"); e(f"s_lshl_b32 {sU}, {sU}, 9")
        e(f"v_add_u32 {kr0}, {sV}, {kr0}"); e(f"v_add_u32 {kr1}, {sU}, {kr0}"); e(f"v_add_u32 {vr0}, {sT}, {vr0}"); e(f"v_add_u32 {vr1}, {sU}, {vr0}")

def late_regs(e):
    e(f"v_mov_b32 v{VF0}, s{sF0[0]}")
    for k in range(1, 4): e(f"v_writelane_b32 v{VF0}, s{sF0[k]}, {k}")
    e(f"v_xor_b32 {vL1}, 0x400, {vL0}")

def epilogue_F(e, w2):
    w2.step(1)
    for b in range(10): gelu_block(e, b, b)

def pack(e, b, r0, n, dst):
    for j in range(n): e(f"v_cvt_pk_bf16_f32 v{dst+j}, {accr(b, r0+2*j)}, {accr(b, r0+2*j+1)}")
    tick()

def epilogue_B(e, w2):
    w2.step(1)
    kw, vw, hw, kr0, kr1, vr0, vr1 = [f"v{i}" for i in XA]
    SD = [EX - 6, ACC0 + 160]
    q = lambda hd, s: acc(3*hd, 4*s, 4*s+3); k = lambda hd, s: acc(3*hd+1, 4*s, 4*s+3); v = lambda hd, s: acc(3*hd+2, 4*s, 4*s+3)
    kp = lambda hd, s: acc(3*hd, 8+4*s, 11+4*s)
    c = 28 ** -0.5 * math.log2(math.e)
    e(f"v_mov_b32 v1, {vW2b}")
    global_vW2b("v1")
    for b in (1, 4): pack(e, b, 0, 8, ACC0 + 16 * b)
    e("s_mov_b32 exec_lo, 0xff000000"); e("s_mov_b32 exec_hi, 0xff000000")
    for hd in range(2):
        for s in range(2):
            for m in range(2):
                e(f"ds_write_b64 {kw}, {acc(3*hd+1, 4*s+2*m, 4*s+2*m+1)} offset:{hd*512 + 32*s + 16*m}", tag="ex")
    e("s_mov_b64 exec, -1")
    for b in (2, 5): pack(e, b, 0, 8, ACC0 + 16 * b)
    pack(e, 10, 8, 4, ACC0 + 160)
    for hd in range(2): e(f"ds_write_b64 {vw}, {acc(3*hd+2, 6, 7)} offset:{hd*512}", tag="ex")
    e(f"s_bitcmp1_b32 {sW}, 0"); e("s_cbranch_scc1 L_halo_v")
    ek = e.fork()
    for j in range(4):
        row = 8 * (j >> 1) + 2 * (j & 1)
        ek(f"ds_write_b16 {hw}, {accr(10, j)} offset:{64*row}", tag="ex")
        ek(f"ds_write_b16_d16_hi {hw}, {accr(10, j)} offset:{64*(row+1)}", tag="ex")
    ek("s_branch L_halo_done")
    ev = e.fork()
    ev(f"ds_write_b64 {hw}, {acc(10, 2, 3)} offset:0", tag="ex")
    ev(f"ds_write_b64 {hw}, {acc(10, 0, 1)} offset:512", tag="ex")
    e.lines += ek.lines; e.label("L_halo_v"); e.lines += ev.lines; e.label("L_halo_done")
    e.lg = list(ev.lg); e.hist = []
    for b in (0, 3): pack(e, b, 0, 8, ACC0 + 16 * b)
    e("s_mov_b32 exec_lo, 0")
    for hd in range(2):
        for r in (6, 7): e(f"v_mov_b32 {accr(3*hd, r)}, 0")
    e("s_mov_b32 exec_lo, -1")
    for hd in range(2):
        for r in (12, 13): e(f"v_mov_b32 {accr(3*hd+1, r)}, 0")
    e.wait(lg=0); e("s_barrier")
    stamp(e, 27)
    for hd in range(2):
        for s in range(2):
            for m in range(2):
                e(f"ds_read_b64 {acc(3*hd, 8+4*s+2*m, 9+4*s+2*m)}, {(kr0, kr1)[hd]} offset:{32*s + 16*m}", tag="kp")
        e(f"ds_read_b64 {acc(3*hd+2, 8, 9)}, {(vr0, vr1)[hd]}", tag="kp")
    for hd in range(2):
        sd = vr(SD[hd], 16)
        e(f"v_mfma_f32_32x32x16_bf16 {sd}, {k(hd, 0)}, {q(hd, 0)}, {vr(MSK, 16)}")
        e(f"v_mfma_f32_32x32x16_bf16 {sd}, {k(hd, 1)}, {q(hd, 1)}, {sd}")
    gelu_block(e, 6, 0); gelu_block(e, 7, 1)
    SP = [ACC0 + 16 * 6, ACC0 + 16 * 7]
    e.wait(lg="kp")
    for hd in range(2):
        sp = vr(SP[hd], 16)
        e(f"v_mfma_f32_32x32x16_bf16 {sp}, {kp(hd, 0)}, {q(hd, 0)}, {vr(MSK+4, 16)}")
        e(f"v_mfma_f32_32x32x16_bf16 {sp}, {kp(hd, 1)}, {q(hd, 1)}, {sp}")
    gelu_block(e, 8, 2)
    RS = [XN[0], XN[0] + 2]
    def softmax(hd):
        vals = [SD[hd] + r for r in range(16)] + [SP[hd] + 12 + r for r in range(4)]
        m0, m1 = TMP, TMP + 1
        e(f"v_max3_f32 v{m0}, v{vals[0]}, v{vals[1]}, v{vals[2]}"); e(f"v_max3_f32 v{m1}, v{vals[3]}, v{vals[4]}, v{vals[5]}")
        for j in range(6, 18, 4):
            e(f"v_max3_f32 v{m0}, v{m0}, v{vals[j]}, v{vals[j+1]}"); e(f"v_max3_f32 v{m1}, v{m1}, v{vals[j+2]}, v{vals[j+3]}")
        e(f"v_max3_f32 v{m0}, v{m0}, v{vals[18]}, v{vals[19]}"); e(f"v_max_f32 v{m0}, v{m0}, v{m1}")
        tick()
        e(f"v_mov_b32 v{m1}, v{m0}"); e(f"v_permlane32_swap_b32 v{m0}, v{m1}"); e(f"v_max_f32 v{m0}, v{m0}, v{m1}")
        e(f"v_mul_f32 v{m0}, {f32(-c)}, v{m0}")
        for j in range(0, 20, 2): e(f"v_pk_fma_f32 {vr(vals[j], 2)}, {vr(vals[j], 2)}, {sC2}, {vr(m0, 2)} op_sel_hi:[1,1,0]")
        for j in range(20):
            if j % 5 == 0: tick()
            e(f"v_exp_f32 v{vals[j]}, v{vals[j]}")
        tick()
        s0 = TMP + 2
        e(f"v_pk_add_f32 {vr(s0, 2)}, {vr(vals[0], 2)}, {vr(vals[2], 2)}"); e(f"v_pk_add_f32 {vr(s0+2, 2)}, {vr(vals[4], 2)}, {vr(vals[6], 2)}")
        for j in range(8, 20, 4):
            e(f"v_pk_add_f32 {vr(s0, 2)}, {vr(s0, 2)}, {vr(vals[j], 2)}"); e(f"v_pk_add_f32 {vr(s0+2, 2)}, {vr(s0+2, 2)}, {vr(vals[j+2], 2)}")
        tick()
        for j in range(8): e(f"v_cvt_pk_bf16_f32 v{SD[hd]+j}, v{vals[2*j]}, v{vals[2*j+1]}")
        for j in range(2): e(f"v_cvt_pk_bf16_f32 {accr(3*hd+1, 14+j)}, v{vals[16+2*j]}, v{vals[17+2*j]}")
        e(f"v_pk_add_f32 {vr(s0, 2)}, {vr(s0, 2)}, {vr(s0+2, 2)}"); e(f"v_add_f32 v{s0}, v{s0}, v{s0+1}")
        od = vr(SP[hd], 16)
        e(f"v_mfma_f32_32x32x16_bf16 {od}, {v(hd, 0)}, {vr(SD[hd], 4)}, 0")
        e(f"v_mov_b32 v{s0+1}, v{s0}")
        e(f"v_mfma_f32_32x32x16_bf16 {od}, {v(hd, 1)}, {vr(SD[hd]+4, 4)}, {od}")
        e(f"v_permlane32_swap_b32 v{s0}, v{s0+1}")
        e(f"v_mfma_f32_32x32x16_bf16 {od}, {acc(3*hd+2, 6, 9)}, {acc(3*hd+1, 12, 15)}, {od}")
        e(f"v_add_f32 v{s0}, v{s0}, v{s0+1}"); e(f"v_rcp_f32 v{RS[hd]}, v{s0}")
    def finish(hd):
        for j in range(0, 16, 2): e(f"v_pk_mul_f32 {vr(SP[hd]+j, 2)}, {vr(SP[hd]+j, 2)}, {vr(RS[hd], 2)} op_sel_hi:[1,0]")
        tick()
        for j in range(8): e(f"v_cvt_pk_bf16_f32 {accr(3*hd, j)}, v{SP[hd]+2*j}, v{SP[hd]+2*j+1}")
        e("s_mov_b32 exec_lo, 0")
        for r in (6, 7): e(f"v_mov_b32 {accr(3*hd, r)}, 0")
        e("s_mov_b32 exec_lo, -1")
        a2_store(e, acc(3*hd, 0, 3), 4 + 2*hd); a2_store(e, acc(3*hd, 4, 7), 5 + 2*hd)
    stamp(e, 28)
    softmax(0)
    late_regs(e); e(f"s_mov_b32 {sO1}, {sO0}")
    if OPT.bpoll == 0: poll_issue(e, 13, "poll")
    softmax(1)
    if OPT.bpoll >= 1: poll_issue(e, 13, "poll")
    stamp(e, 29)
    def start():
        e(f"s_cmp_ge_u32 {sS}, 28"); e("s_cbranch_scc1 L_pollFB_ok"); a2_start(e, "B", w2)
    if OPT.bpoll == 0: start()
    finish(0)
    e(f"s_add_u32 {sT}, {sA2}, {2 * 2048}")
    gelu_block(e, 9, 3)
    if OPT.bpoll == 1: start()
    finish(1)

def global_vW2b(name):
    global vW2b
    vW2b = name

def flags_entry_load(e, vt):
    e(f"s_lshr_b32 {sT}, {sT2}, 1"); e(f"s_lshl_b32 {sT}, {sT}, 2"); e(f"s_add_u32 {sT}, {sT}, {sW}"); e(f"s_lshl_b32 {sT}, {sT}, 7")
    e(f"s_lshl_b32 {sU}, {sI}, 2"); e(f"s_add_u32 {sU}, {sU}, {sCG}"); e(f"s_lshl_b32 {sU}, {sU}, 5"); e(f"s_add_u32 {sU}, {sU}, {sJJ}"); e(f"s_lshl_b32 {sU}, {sU}, 2")
    e(f"v_and_b32 v{vt}, 3, v0"); e(f"v_lshl_add_u32 v{vt}, v{vt}, 2, {sT}"); e(f"v_writelane_b32 v{vt}, {sU}, 4")
    e(f"s_mov_b32 {sT}, {FLG}")
    e(f"buffer_load_dword v{vt+1}, v{vt}, {SRD_WS}, {sT} offen sc1", tag="fl0")

def flags_entry_keep(e, vt):
    e.wait(vm="fl0")
    for k in range(5): e(f"v_readlane_b32 s{sF0[k]}, v{vt+1}, {k}")

def flag_store(e, name):
    e(f"s_cmp_lg_u32 {sW}, 0"); e(f"s_cbranch_scc1 L_noflag_{name}")
    e(f"s_lshl_b32 {sT}, {sI}, 2"); e(f"s_add_u32 {sT}, {sT}, {sCG}"); e(f"s_lshl_b32 {sU}, {sT}, 5"); e(f"s_add_u32 {sU}, {sU}, {sJJ}")
    e(f"s_lshl_b32 {sU}, {sU}, 2"); e(f"s_add_u32 {sU}, {sU}, {FLG}"); e(f"s_add_u32 {sV}, s{sF0[4]}, 1")
    e("s_mov_b64 exec, 1")
    e(f"v_mov_b32 v5, {sV}"); e(f"v_mov_b32 v6, 0")
    e(f"buffer_store_dword v5, v6, {SRD_WS}, {sU} offen sc1"); e.vm.pop()
    e(f"s_lshl_b32 {sT}, {sT}, 2"); e(f"s_lshl_b32 {sU}, 1, {sJJ}")
    e(f"v_mov_b32 v7, {sU}")
    e(f"buffer_atomic_or v7, v6, {SRD_DBG}, {sT} offen sc1"); e.vm.pop()
    e("s_mov_b64 exec, -1")
    e.label(f"L_noflag_{name}")

A2 = 56; D = 13
def a2_ops(kl):
    ops = []
    if kl == OPT.poll2_at: ops.append(("POLL2", None))
    if kl == 20: ops.append(("CHECKB", None))
    base, r = (sAG[kl // 5], kl % 5) if kl < 20 else (sAB[(kl - 20) // 8], (kl - 20) % 8)
    if r >= 2 and r % 2 == 0: ops.append(f"s_add_u32 {sA2F}, {base}, {r * 2048}")
    so = base if r < 2 else sA2F
    ops += [(f"buffer_load_dwordx4 {ar(A2 + 8*(kl % D) + 4*u, 4)}, {(vL0, vL1)[u]}, {SRD_WS}, {so} offen offset:{2048*(r & 1)} {OPT.ld_pol}", f"a{kl}") for u in range(2)]
    return ops

def a2_start(e, name, w2):
    e.wait(vm="poll")
    poll_check(e, 3, "L_pollF" + name, 13)
    e(f"s_and_b32 {sFLAG}, vcc_lo, 15"); e(f"s_cmp_eq_u32 {sFLAG}, 15"); e(f"s_cselect_b32 {sO2}, 0x40000000, {sO0}")
    stamp(e, 8)
    groups = []
    for kl in range(OPT.a2_first):
        ops = a2_ops(kl); groups += [ops[:-1], ops[-1:]]
    w2.front(groups)

def tail_F(e, w2):
    stamp(e, 5)
    late_regs(e)
    w2.step(OPT.pub_steps)
    e.wait(vm="st"); e("s_barrier")
    stamp(e, 6)
    flag_store(e, "F")
    while w2.left() > 6: w2.step(1)
    e(f"s_mov_b32 {sO1}, {sO0}")
    poll_issue(e, 13, "poll")
    while not w2.done(): w2.step(1)
    a2_start(e, "F", w2)
    while not w2.done(): w2.step(1)
    stamp(e, 7)

def tail_B(e, w2):
    stamp(e, 5)
    e(f"s_cmp_ge_u32 {sS}, 28"); e("s_cbranch_scc1 L_nophase2")
    if OPT.pub_at < 0:
        if OPT.bpoll == 2: a2_start(e, "B", w2)
        w2.step(OPT.pubB_steps)
        e.wait(vm="st"); e("s_barrier")
        stamp(e, 6)
        flag_store(e, "B")
    while not w2.done(): w2.step(1)
    stamp(e, 7)

def poll_issue(e, vflag, tag):
    e(f"buffer_load_dword v{vflag}, {vPO}, {SRD_WS}, {sO1} offen sc1", tag=tag)

def poll_check(e, mask, name, vflag):
    e(f"s_mov_b32 {sCNT}, 0")
    e(f"v_cmp_ne_u32 vcc, v{vflag}, v{VF0}")
    e(f"s_and_b32 {sT}, vcc_lo, {mask}"); e(f"s_cmp_eq_u32 {sT}, {mask}"); e(f"s_cbranch_scc1 {name}_ok")
    e.label(name)
    f = e.fork()
    f("s_sleep 1")
    poll_issue(f, vflag, "poll")
    f(f"s_add_u32 {sCNT}, {sCNT}, 1")
    f.wait(vm=0)
    f(f"v_cmp_ne_u32 vcc, v{vflag}, v{VF0}")
    f(f"s_and_b32 {sT}, vcc_lo, {mask}"); f(f"s_cmp_eq_u32 {sT}, {mask}"); f(f"s_cbranch_scc1 {name}_ok")
    f(f"s_and_b32 {sT}, {sCNT}, 63"); f(f"s_cmp_lg_u32 {sT}, 0"); f(f"s_cbranch_scc1 {name}")
    f(f"v_lshrrev_b32 v{vflag}, 7, {vPO}"); f(f"v_lshlrev_b32 v{vflag}, 2, v{vflag}")
    f(f"buffer_load_dword v{vflag}, v{vflag}, {SRD_DBG}, 0 offen sc1", tag="poll")
    f.wait(vm=0)
    f(f"v_readfirstlane_b32 vcc_lo, v{vflag}")
    f(f"s_and_b32 {sT}, vcc_lo, {mask}"); f(f"s_cmp_eq_u32 {sT}, {mask}"); f(f"s_cbranch_scc1 {name}_ok")
    f(f"s_cmp_lt_u32 {sCNT}, 0x40000"); f(f"s_cbranch_scc1 {name}")
    e.lines += f.lines
    e.label(name + "_ok")

def phase2(e, left):
    o = OPT
    lq = []
    for kind, j, pre in left:
        assert kind in ("D0", "D1")
        ops = w2_dma(j); k = [i for i, x in enumerate(ops) if isinstance(x, tuple)][0] + 1
        lq.append(list(pre) + (ops[:k] if kind == "D0" else ops[k:]))
    WJ = 96
    def put(x):
        if isinstance(x, str): e(x)
        elif x[0] == "POLL2": e(f"buffer_load_dword v11, {vPO}, {SRD_WS}, {sO2} offen sc1", tag="poll2")
        elif x[0] == "CHECKB":
            e(f"s_cmp_eq_u32 {sFLAG}, 15"); e("s_cbranch_scc1 L_pollB_ok")
            f = e.fork(); f.wait(vm="poll2"); poll_check(f, 15, "L_pollB", 11); e.lines += f.lines; stamp(e, 9)
        else: emit_q(e, x)
    issued = o.a2_first
    C2 = 16
    def jit_ops(j):
        _, lo, reg = w2_slot(j)
        return [("WAITV", f"v{j}")] + [(f"ds_read_b64_tr_b16 {vr(WJ + 8*(j % 4) + 4*u + 2*m, 2)}, v{TB[2*reg+u]} offset:{lo + 1024*m}", f"t{j}") for u in range(2) for m in range(2)]
    NB = 36 - o.lastbm
    def mm(kl, u, p):
        wfr = ar(w2_areg(kl) + 4*u, 4) if kl < NMOVE else vr(WJ + 8*(kl % 4) + 4*u, 4)
        d = vr(C2 + 16 * (2*u + p), 16)
        e(f"v_mfma_f32_32x32x16_bf16 {d}, {wfr}, {ar(A2 + 8*(kl % D) + 4*p, 4)}, {'0' if kl == 0 else d}")
    for kl in range(NB):
        if kl == o.pub_at:
            e(f"s_cmp_lt_u32 {sJJ}, 2"); e("s_cbranch_scc1 L_pubdone")
            f = e.fork(); f.wait(vm="st"); f("s_barrier"); stamp(f, 6); flag_store(f, "B"); e.lines += f.lines
            e.label("L_pubdone")
        e.wait(vm=f"a{kl}", lg=f"t{kl}")
        fa = jit_ops(kl + 2) if NMOVE <= kl + 2 < 36 else (lq.pop(0) if lq else [])
        if kl == NB - 1:
            for j in range(kl + 3, 36): fa += jit_ops(j)
        fb = []
        for _ in range(2):
            if issued < min(36, kl + D) and issued < kl + o.a2_ahead:
                assert issued < 20 or kl >= o.pub_at
                fb += a2_ops(issued); issued += 1
        n = -(-len(fb) // 3)
        parts = [fa[:3], fa[3:] + fb[:n], fb[n:2*n], fb[2*n:]]
        for g in range(1, 3):
            while parts[g] and isinstance(parts[g][-1], str) and parts[g][-1].startswith("s_cmp"): parts[g].append(parts[g+1].pop(0))
        for g, (u, p) in enumerate(((0, 1), (1, 0), (1, 1), (0, 0))):
            mm(kl, u, p)
            for x in parts[g]: put(x)
        RX = 88
        if kl == 6:
            e(f"s_lshl_b32 {sU}, {sW}, 11"); e(f"s_add_u32 {sU}, {sU}, {HALO}")
            e("v_and_b32 v12, 31, v0"); e("v_lshlrev_b32 v12, 6, v12"); e("v_lshrrev_b32 v8, 5, v0"); e("v_lshl_add_u32 v12, v8, 3, v12"); e(f"v_add_u32 v12, {sU}, v12")
            e("v_lshlrev_b32 v8, 4, v0"); e(f"v_add_u32 v8, {sU}, v8")
        if kl == 7:
            for h in range(2): e(f"ds_write_b128 v8, {ar(ARX + 4*h, 4)} offset:{1024*h}", tag="rxw")
        if kl == 9:
            e.wait(lg="rxw")
            for g in range(4): e(f"ds_read_b64 {vr(RX + 2*g, 2)}, v12 offset:{16*g}", tag="rxr")
        if kl == 11:
            e.wait(lg="rxr")
            for k in range(8): e(f"v_lshlrev_b32 v{128+2*k}, 16, v{RX+k}"); e(f"v_and_b32 v{129+2*k}, {sMSK}, v{RX+k}")
            e("v_and_b32 v8, 32, v0"); e("v_lshrrev_b32 v8, 2, v8"); e(f"v_add_u32 v3, {vRX}, v8")
        if kl == 31:
            e("v_lshlrev_b32 v9, 4, v0"); e(f"v_add_u32 v10, {sRL}, v9")
            for j in range(1, 4):
                e(f"s_xor_b32 {sT}, {sW}, {j}"); e(f"s_mul_i32 {sT}, {sT}, {SLOT}"); e(f"v_add_u32 v{10+j}, {sT}, v9")
    assert issued == 36 and not lq
    stamp(e, 10)
    e.wait(vm="a35", lg=0)
    wq = []
    for j in (1, 2, 3, 0):
        for kl in range(NB, 36):
            mm(kl, j >> 1, j & 1)
            if kl > NB or o.lastbm < 3:
                for _ in range(2):
                    if wq: e(wq.pop(0), tag="red")
        while wq: e(wq.pop(0), tag="red")
        if j: wq = [f"ds_write_b128 v10, {vr(C2 + 16*j + 4*q, 4)} offset:{j*4096 + q*1024}" for q in range(4)]
    for j in range(0, 16, 2): e(f"v_pk_add_f32 {vr(C2+j, 2)}, {vr(C2+j, 2)}, {vr(128+j, 2)}")
    e.wait(lg=0); e("s_barrier")
    for j in range(1, 4):
        for q in range(4): e(f"ds_read_b128 {vr(C2 + 16*j + 4*q, 4)}, v{10+j} offset:{j*4096 + q*1024}", tag=f"rr{j}")
    for jj in range(1, 4):
        e.wait(lg=f"rr{jj}")
        for j in range(0, 16, 2): e(f"v_pk_add_f32 {vr(C2+j, 2)}, {vr(C2+j, 2)}, {vr(C2+16*jj+j, 2)}")
    for j in range(8): e(f"v_cvt_pk_bf16_f32 v{C2+j}, v{C2+2*j}, v{C2+2*j+1}")
    for g in (0, 2):
        e(f"v_permlane32_swap_b32 v{C2+2*g}, v{C2+2*g+2}"); e(f"v_permlane32_swap_b32 v{C2+2*g+1}, v{C2+2*g+3}")
        e(f"buffer_store_dwordx4 {vr(C2 + 2*g, 4)}, v3, {SRD_OUT}, 0 offen offset:{16*g}", tag="out")
    e("s_branch L_fin")
    e.label("L_nophase2")
    e("s_waitcnt vmcnt(0)"); e("s_barrier"); flag_store(e, "X")
    e.label("L_fin")
    e.hist = []
    if o.ts:
        stamp(e, 11)
        e(f"s_memrealtime s[{sTS+2}:{sTS+3}]"); e.wait(lg=0); e(f"v_writelane_b32 v255, s{sTS+2}, 30")
        e(f"s_lshl_b32 {sT}, s2, 2"); e(f"s_add_u32 {sT}, {sT}, {sW}"); e(f"s_lshl_b32 {sT}, {sT}, 8"); e(f"s_add_u32 {sT}, {sT}, {16 << 20}")
        e("s_mov_b32 s22, 0x2000000"); e("v_lshlrev_b32 v1, 2, v0")
        e(f"buffer_store_dword v255, v1, {SRD_WS}, {sT} offen")
    if o.padus:
        e.wait(vm=0)
        e.label("L_pad")
        e("s_memrealtime s[96:97]"); e.wait(lg=0); e("s_sub_u32 s96, s96, s98"); e("s_and_b32 s96, s96, 0xffff"); e(f"s_cmp_lt_u32 s96, {o.padus*100}"); e("s_cbranch_scc1 L_pad")

KD = """.amdhsa_kernel {name}
  .amdhsa_next_free_vgpr 512
  .amdhsa_next_free_sgpr 102
  .amdhsa_accum_offset 256
  .amdhsa_group_segment_fixed_size 0
  .amdhsa_kernarg_size 80
  .amdhsa_user_sgpr_count 2
  .amdhsa_user_sgpr_kernarg_segment_ptr 1
  .amdhsa_system_sgpr_workgroup_id_x 1
.end_amdhsa_kernel
"""

def generate(o):
    global OPT
    OPT = o
    out = open("parallel_sum__sliding_local_dilated__geglu_ffn__prompt.s.ref").read().split("; Override launch")[0]
    out += f"; @launch grid=(256,1,1) block=(256,1,1) lds={LDS_BYTES}\n"
    out += '.amdgcn_target "amdgcn-amd-amdhsa--gfx950"\n.text\n'
    plan_slots(o.w2_loop)
    e = Emitter(); setup(e)
    e(f"s_cmp_ge_u32 {sJJ}, 2"); e("s_cbranch_scc1 L_typeB")
    ends = []; lefts = []
    for typ in "FB":
        global_vW2b("v233")
        f = e.fork(); prologue(f, typ); n = main_loop(f, typ); stamp(f, 4)
        w2 = W2T(f, n, o.perF if typ == "F" else o.perB); TICK[0] = w2
        (epilogue_F if typ == "F" else epilogue_B)(f, w2); (tail_F if typ == "F" else tail_B)(f, w2)
        lefts.append(list(w2.q))
        if typ == "F": f(f"v_mov_b32 v1, {vW2b}"); f("s_branch L_join")
        ends.append(f)
        sys.stderr.write(f"{typ}: {f.nins} instrs {f.stats}\n")
    e.lines += ends[0].lines; e.label("L_typeB"); e.lines += ends[1].lines; e.label("L_join")
    tags = lambda l: [t for t, _ in l]
    a, b = ends
    assert lefts[0] == lefts[1]
    sys.stderr.write(f"join vm F {tags(a.vm)}\njoin vm B {tags(b.vm)}\n")
    def younger(l):
        d = {}
        for k, (t, _) in enumerate(l): d[t] = len(l) - 1 - k
        return d
    ya, yb = younger(a.vm), younger(b.vm)
    y = {t: min(ya.get(t, 999), yb.get(t, 999)) for t in set(ya) | set(yb)}
    dst = {}
    for t, r in a.vm + b.vm: dst.setdefault(t, set()).update(r)
    m = max(y.values()) + 1
    merged = [[None, set()] for _ in range(m)]
    e.vm = []
    for k in range(m):
        here = [t for t in y if y[t] == m - 1 - k]
        assert len(here) <= 1 or True
        e.vm.append((tuple(here) if len(here) > 1 else (here[0] if here else "_"), set().union(*[dst[t] for t in here]) if here else set()))
    assert tags(a.lg) == tags(b.lg), (tags(a.lg), tags(b.lg))
    e.lg = list(a.lg); e.hist = []; e.smem = False
    global_vW2b("v1")
    phase2(e, lefts[0]); e.label("L_end"); e("s_endpgm")
    out += f".globl {KN}\n.p2align 8\n.type {KN},@function\n{KN}:\n" + e.text()
    out += '.section .rodata,"a"\n.p2align 6\n' + KD.format(name=KN)
    return out

if __name__ == "__main__":
    o = Opt()
    for a in sys.argv[2:]:
        k, v = a.split("=")
        cur = getattr(o, k)
        setattr(o, k, (v == "1") if isinstance(cur, bool) else type(cur)(v.replace("+", " ")))
    open(sys.argv[1], "w").write(generate(o))
```

```python
import sys
KN = "parallel_sum__sliding_local_dilated__geglu_ffn__prompt_kernel"
HDR = """; @launch grid=({nwg},1,1) block=({block},1,1) lds={lds}
.amdgcn_target "amdgcn-amd-amdhsa--gfx950"
.text
.globl {KN}
.p2align 8
.type {KN},@function
{KN}:
"""
FTR = """
L_end:
    s_endpgm
.section .rodata,"a"
.p2align 6
.amdhsa_kernel {KN}
  .amdhsa_next_free_vgpr {vgpr}
  .amdhsa_next_free_sgpr 102
  .amdhsa_accum_offset {acc}
  .amdhsa_group_segment_fixed_size 0
  .amdhsa_kernarg_size 80
  .amdhsa_user_sgpr_count 2
  .amdhsa_user_sgpr_kernarg_segment_ptr 1
  .amdhsa_system_sgpr_workgroup_id_x 1
.end_amdhsa_kernel
"""
def gen(seg, rstride, ninstr, groups, gstride, mode, depth, npass=3, nwg=256, waves=4, segoff=0, xcdmap=0, pol=""):
    P = seg // 16
    rows = 64 // P
    o = HDR.format(nwg=nwg, block=64*waves, lds=65536 if mode == "lds" else 0, KN=KN)
    o += f"""
    s_cmp_ge_u32 s2, {nwg}
    s_cbranch_scc1 L_end
    s_load_dwordx2 s[4:5], s[0:1], 72
    s_load_dwordx2 s[6:7], s[0:1], 0
    v_and_b32 v1, 63, v0
    v_lshrrev_b32 v2, 6, v0      ; wave
    s_nop 0
    v_readfirstlane_b32 s28, v2
    s_waitcnt lgkmcnt(0)
    s_mov_b32 s8, s4
    s_mov_b32 s9, s5
    s_mov_b32 s10, 0x100000
    s_mov_b32 s11, 0x20000
    s_mov_b32 s12, s6
    s_mov_b32 s13, s7
    s_mov_b32 s14, 0x8000000
    s_mov_b32 s15, 0x20000
"""
    import math
    if P & (P - 1) == 0:
        sh = int(math.log2(P))
        o += f"    v_lshrrev_b32 v3, {sh}, v1\n    v_and_b32 v4, {P-1}, v1\n"
    else:
        magic = (65536 + P - 1) // P
        o += f"    v_mul_u32_u24 v3, {magic}, v1\n    v_lshrrev_b32 v3, 16, v3\n    v_mul_u32_u24 v4, {P}, v3\n    v_sub_u32 v4, v1, v4\n"
    o += f"""
    s_mov_b32 s16, {rstride}
    v_mul_lo_u32 v3, v3, s16
    v_lshlrev_b32 v4, 4, v4
    v_add_u32 v3, v3, v4
    s_mul_i32 s17, s28, {rows*rstride}
"""
    if xcdmap:
        o += f"    s_lshr_b32 s18, s2, 3\n    s_and_b32 s18, s18, {groups-1}\n"
    else:
        o += f"    s_and_b32 s18, s2, {groups-1}\n"
    o += f"""
    s_mul_i32 s18, s18, {gstride}
    s_add_u32 s17, s17, s18
    s_add_u32 s17, s17, {segoff}
    s_lshl_b32 s29, s28, 14      ; lds base per wave 16KB
    s_mov_b32 s40, 0
L_pass:
    s_memtime s[20:21]
    s_memrealtime s[22:23]
    s_waitcnt lgkmcnt(0)
    s_mov_b32 s19, s17
    s_mov_b32 s30, 0
L_loop:
"""
    U = 8
    for u in range(U):
        if mode == "lds":
            o += f"    s_add_u32 s31, s29, {u*1024}\n    s_mov_b32 m0, s31\n    s_nop 0\n"
            o += f"    buffer_load_dwordx4 v3, s[12:15], s19 offen {pol} lds\n"
        else:
            o += f"    buffer_load_dwordx4 v[{16+4*u}:{19+4*u}], v3, s[12:15], s19 offen {pol}\n"
        o += f"    s_add_u32 s19, s19, {waves*rows*rstride}\n"
        o += f"    s_waitcnt vmcnt({depth})\n"
    o += f"""
    s_memtime s[34:35]
    s_lshr_b32 s36, s30, 3
    s_mov_b32 m0, s36
    s_waitcnt lgkmcnt(0)
    s_sub_u32 s34, s34, s20
    v_writelane_b32 v60, s34, m0
    s_add_u32 s30, s30, {U}
    s_cmp_lt_u32 s30, {ninstr}
    s_cbranch_scc1 L_loop
    s_waitcnt vmcnt(0)
    s_memtime s[24:25]
    s_memrealtime s[26:27]
    s_waitcnt lgkmcnt(0)
    s_lshl_b32 s3, s2, 4
    s_add_u32 s3, s3, s28
    s_lshl_b32 s3, s3, 2
    s_add_u32 s3, s3, s40
    s_lshl_b32 s3, s3, 5
    v_mov_b32 v4, s3
    v_mov_b32 v8, s20
    v_mov_b32 v9, s21
    v_mov_b32 v10, s22
    v_mov_b32 v11, s23
    v_mov_b32 v12, s24
    v_mov_b32 v13, s25
    v_mov_b32 v14, s26
    v_mov_b32 v15, s27
    v_cmp_eq_u32 vcc, 0, v1
    s_and_saveexec_b64 s[32:33], vcc
    buffer_store_dwordx4 v[8:11], v4, s[8:11], 0 offen
    buffer_store_dwordx4 v[12:15], v4, s[8:11], 0 offen offset:16
    s_mov_b64 exec, s[32:33]
    s_lshl_b32 s37, s2, 2
    s_add_u32 s37, s37, s28
    s_lshl_b32 s37, s37, 2
    s_add_u32 s37, s37, s40
    s_lshl_b32 s37, s37, 6
    s_add_u32 s37, s37, 0x80000
    v_lshlrev_b32 v5, 2, v1
    v_cmp_gt_u32 vcc, 16, v1
    s_and_saveexec_b64 s[32:33], vcc
    buffer_store_dword v60, v5, s[8:11], s37 offen
    s_mov_b64 exec, s[32:33]
    s_waitcnt vmcnt(0)
    s_barrier
    s_add_u32 s40, s40, 1
    s_cmp_lt_u32 s40, {npass}
    s_cbranch_scc1 L_pass
"""
    o += FTR.format(KN=KN, vgpr=256, acc=256)
    return o

cfgs = {}
for pol in ("nt", "sc1", "sc0 sc1", "sc0 sc1 nt"):
    t = pol.replace(" ", "")
    cfgs["full_" + t] = dict(seg=1024, rstride=1024, ninstr=96, groups=16, gstride=96*4*1024, mode="lds", depth=48, pol=pol)
    cfgs["s64_" + t] = dict(seg=64, rstride=3584, ninstr=96, groups=16, gstride=128, mode="lds", depth=48, pol=pol)
cfgs["s32_sc1"] = dict(seg=32, rstride=3584, ninstr=96, groups=16, gstride=128, mode="lds", depth=48, pol="sc1")
cfgs["full_128wg"] = dict(seg=1024, rstride=1024, ninstr=96, groups=16, gstride=96*4*1024, mode="lds", depth=48, nwg=128)
cfgs["full_64wg"] = dict(seg=1024, rstride=1024, ninstr=96, groups=16, gstride=96*4*1024, mode="lds", depth=48, nwg=64)
if __name__ == "__main__":
    for n, c in cfgs.items():
        open(f"bw_{n}.s", "w").write(gen(**c))
    print(" ".join(f"work/bw_{n}.s" for n in cfgs))
```

```python
KN = "parallel_sum__sliding_local_dilated__geglu_ffn__prompt_kernel"
from gen_bw import HDR, FTR
def gen(body, reps):
    o = HDR.format(nwg=256, block=256, lds=65536, KN=KN)
    o += """
    s_cmp_ge_u32 s2, 256
    s_cbranch_scc1 L_end
    s_load_dwordx2 s[4:5], s[0:1], 72
    s_load_dwordx2 s[6:7], s[0:1], 0
    v_and_b32 v1, 63, v0
    v_lshrrev_b32 v2, 6, v0
    s_nop 0
    v_readfirstlane_b32 s28, v2
    s_waitcnt lgkmcnt(0)
    s_mov_b32 s8, s4
    s_mov_b32 s9, s5
    s_mov_b32 s10, 0x100000
    s_mov_b32 s11, 0x20000
    s_mov_b32 s12, s6
    s_mov_b32 s13, s7
    s_mov_b32 s14, 0x100000
    s_mov_b32 s15, 0x20000
    v_lshlrev_b32 v3, 4, v0
"""
    for i in range(16):
        o += f"    s_lshl_b32 s16, s28, 10\n    s_add_u32 m0, s16, {i*4096}\n    s_mov_b32 s17, {i*4096}\n    buffer_load_dwordx4 v3, s[12:15], s17 offen lds\n"
    for i in range(16):
        o += f"    s_mov_b32 s17, {i*4096}\n    buffer_load_dwordx4 a[{4*i}:{4*i+3}], v3, s[12:15], s17 offen\n"
    for i in range(4):
        o += f"    s_mov_b32 s17, {i*4096+65536}\n    buffer_load_dwordx4 v[{192+4*i}:{195+4*i}], v3, s[12:15], s17 offen\n"
    for i in range(16, 192): o += f"    v_mov_b32 v{i}, 0\n"
    for i in range(64, 240): o += f"    v_accvgpr_write_b32 a{i}, 0\n"
    o += "    v_mov_b32 v210, 1.0\n    v_mov_b32 v211, 0.5\n"
    for i in range(212, 228): o += f"    v_mov_b32 v{i}, 0x3f9d70a4\n"
    o += "    s_mov_b32 s18, 0\n    s_lshl_b32 s16, s28, 10\n    s_add_u32 m0, s16, 57344\n    v_lshlrev_b32 v5, 4, v1\n    v_lshlrev_b32 v4, 3, v1\n    s_waitcnt vmcnt(0)\n    s_barrier\n    s_memtime s[20:21]\n    s_memrealtime s[22:23]\n    s_waitcnt lgkmcnt(0)\n    s_mov_b32 s30, 0\nL_loop:\n"
    o += "".join("    " + x + "\n" for x in body)
    o += f"""
    s_add_u32 s30, s30, 1
    s_cmp_lt_u32 s30, {reps}
    s_cbranch_scc1 L_loop
    s_memtime s[24:25]
    s_memrealtime s[26:27]
    s_waitcnt lgkmcnt(0)
    s_sub_u32 s24, s24, s20
    s_sub_u32 s26, s26, s22
    s_lshl_b32 s3, s2, 2
    s_add_u32 s3, s3, s28
    s_lshl_b32 s3, s3, 3
    v_mov_b32 v4, s3
    v_mov_b32 v8, s24
    v_mov_b32 v9, s26
    s_mov_b64 exec, 1
    buffer_store_dwordx2 v[8:9], v4, s[8:11], 0 offen
"""
    return o + FTR.format(KN=KN, vgpr=512, acc=256)
def body(shape, accf, ntr, nvalu, npad=0, share=1, dma=0, b128=0, chain=1, sameA=0):
    out = []
    n = 20 if shape == 32 else 40
    for j in range(n):
        if shape == 32:
            b = (j // chain) % 10; d = f"{accf}[{(16 if accf=='v' else 64)+16*b}:{(31 if accf=='v' else 79)+16*b}]"
            xi = (j % min(chain, 4)) if chain > 1 else (j % share if share > 1 else j // 10)
            out.append(f"v_mfma_f32_32x32x16_bf16 {d}, a[{4*((j//share)%12)}:{4*((j//share)%12)+3}], v[{192+4*xi}:{195+4*xi}], {d}")
            k = ntr if share == 1 or True else 0
        else:
            b = j % 40; d = f"{accf}[{(16 if accf=='v' else 64)+4*b}:{(19 if accf=='v' else 67)+4*b}]"
            out.append(f"v_mfma_f32_16x16x32_bf16 {d}, a[{4*((j//2)%12)}:{4*((j//2)%12)+3}], v[{192+4*(j%2)}:{195+4*(j%2)}], {d}")
        nt = ntr if shape == 32 else (ntr if j % 2 == 0 else 0)
        nv = nvalu if shape == 32 else (nvalu + (j % 2)) // 2
        for t in range(nt):
            r = (4 * ((j if shape == 32 else j // 2) + 6) + 2 * t) % 48
            out.append(f"ds_read_b64_tr_b16 a[{r}:{r+1}], v4 offset:{512*((2*j+t) % 100)}")
        jj = j if shape == 32 else j // 2
        if dma and (shape == 32 or j % 2 == 0) and jj % dma == 0:
            out += ["s_add_u32 s18, s18, 4096", "s_and_b32 s18, s18, 0x7ffff", "buffer_load_dwordx4 v3, s[12:15], s18 offen lds"]
        if b128 and (shape == 32 or j % 2 == 0) and jj % b128 == 1: out.append(f"ds_read_b128 v[{200+4*(jj%2)}:{203+4*(jj%2)}], v5 offset:{1024*(jj%16)}")
        for t in range(nv): out.append(f"v_fma_f32 v{212+(j*4+t)%16}, v{212+(j*4+t)%16}, v210, v211")
        for t in range(npad if shape == 32 else npad // 2): out.append("s_nop 0")
        if nt and j % 2 == 1 or (shape == 16 and nt): out.append("s_waitcnt lgkmcnt(8)")
    return out
C = {
 "c1":   body(32, "v", 0, 0), "c2": body(32, "v", 0, 0, chain=2), "c4": body(32, "v", 0, 0, chain=4), "c20": body(32, "v", 0, 0, chain=20),
 "shareA2": body(32, "v", 0, 0, share=2),
 "c1_t2D": body(32, "v", 2, 0, dma=4), "c2_t2D": body(32, "v", 2, 0, dma=4, chain=2), "c4_t2D": body(32, "v", 2, 0, dma=4, chain=4),
}
if __name__ == "__main__":
    for n, b in C.items(): open(f"pw_{n}.s", "w").write(gen(b, 20))
```
